```python
import torch

def _softmax(x, axis=-1):
    return torch.softmax(x, dim=axis)
def _gelu(x):
    return torch.nn.functional.gelu(x, approximate="tanh")
def _silu(x):
    return torch.nn.functional.silu(x)
def _sigmoid(x):
    return torch.sigmoid(x)
def _layernorm(x, axis=-1, eps=1e-5):
    m = x.mean(dim=axis, keepdim=True)
    v = x.var(dim=axis, keepdim=True, unbiased=False)
    return (x - m) / torch.sqrt(v + eps)
def _scatter_add(tgt, idx, src, axis=0):
    return tgt.clone().index_add_(axis, idx, src)
def _segment_sum(src, seg, n):
    out = torch.zeros((n,) + src.shape[1:], dtype=src.dtype)
    return out.index_add_(0, seg, src)
def _pad(x, pw):
    flat = tuple(v for pair in reversed(pw) for v in pair)
    return torch.nn.functional.pad(x, flat)

kernel_name = 'sequential_preLN__sliding_block__glu_gated_geglu__prompt'

def setup_inputs():

    _w = (lambda a: (lambda t: t.to(torch.bfloat16) if t.is_floating_point() else t)(torch.as_tensor(a)))
    def _A_setup():
        B, S, D = 1, 2048, 448
        return {
            "x": _w((lambda *s: torch.randn(*s, dtype=torch.bfloat16) * 0.05)(B, S, D)),
            "wqkv": _w((lambda *s: torch.randn(*s, dtype=torch.bfloat16) * 0.05)(D, 3 * D)),
            "wo": _w((lambda *s: torch.randn(*s, dtype=torch.bfloat16) * 0.05)(D, D)),
        }
    _A_in = _A_setup()

    def _B_setup():
        B, S, Dm, Df = 1, 2048, 448, 1792
        return {
            "x": _w((lambda *s: torch.randn(*s, dtype=torch.bfloat16) * 0.05)(B, S, Dm)),
            "w_gate": _w((lambda *s: torch.randn(*s, dtype=torch.bfloat16) * 0.8)(Dm, Df) * (Dm ** -0.5)),
            "w_up": _w((lambda *s: torch.randn(*s, dtype=torch.bfloat16) * 0.8)(Dm, Df) * (Dm ** -0.5)),
            "w_down": _w((lambda *s: torch.randn(*s, dtype=torch.bfloat16) * 0.8)(Df, Dm) * (Df ** -0.5)),
        }
    _B_in = _B_setup()

    return {
        "A_x": _A_in["x"],
        "A_wqkv": _A_in["wqkv"],
        "A_wo": _A_in["wo"],
        "B_x": _B_in["x"],
        "B_w_gate": _B_in["w_gate"],
        "B_w_up": _B_in["w_up"],
        "B_w_down": _B_in["w_down"],
    }

def reference(A_x, A_wqkv, A_wo, B_x, B_w_gate, B_w_up, B_w_down):
    def _A_ref(x, wqkv, wo):
        B, S, D = x.shape
        H = 16; Dh = D // H; W = 256
        qkv = (lambda x, *d: x.permute(*d))((x @ wqkv).reshape(B, S, 3, H, Dh), 2, 0, 3, 1, 4)
        q, k, v = qkv[0], qkv[1], qkv[2]
        scores = torch.einsum("bhqd,bhkd->bhqk", q, k) * (Dh ** -0.5)
        idx = torch.arange(S)
        mask = (idx[:, None] - idx[None, :] >= 0) & (idx[:, None] - idx[None, :] < W)
        scores = torch.where(mask[None, None], scores, -1e9)
        p = _softmax(scores, axis=-1)
        o = torch.einsum("bhqk,bhkd->bhqd", p, v)
        return (lambda x, *d: x.permute(*d))(o, 0, 2, 1, 3).reshape(B, S, D) @ wo

    def _B_ref(x, w_gate, w_up, w_down):
        g = torch.einsum("bsd,df->bsf", x, w_gate)
        u = torch.einsum("bsd,df->bsf", x, w_up)
        h = _gelu(g) * u
        return torch.einsum("bsf,fd->bsd", h, w_down)

    x = A_x
    h = x + _A_ref(_layernorm(x, axis=-1), A_wqkv, A_wo)
    h2 = h + _B_ref(_layernorm(h, axis=-1), B_w_gate, B_w_up, B_w_down)
    return h2
```

```python
import re

_REG = re.compile(r"^(-|abs\(|\|)?([vas])(?:(\d+)|\[(\d+):(\d+)\])\)?\|?$")


def regs_of(tok):
    tok = tok.strip()
    m = _REG.match(tok)
    if m:
        f = m.group(2)
        if m.group(3) is not None:
            return {f + m.group(3)}
        return {f + str(i) for i in range(int(m.group(4)), int(m.group(5)) + 1)}
    if tok in ("vcc", "vcc_lo", "vcc_hi"):
        return {"vcc"}
    if tok in ("exec", "exec_lo", "exec_hi"):
        return {"exec"}
    if tok == "m0":
        return {"m0"}
    return set()


TRANS = ("v_exp_f32", "v_log_f32", "v_rcp_f32", "v_rsq_f32", "v_sqrt_f32", "v_sin_f32", "v_cos_f32",
         "v_rcp_iflag_f32")


class Ins:
    def __init__(self, text):
        self.text = text
        t = text.split(";")[0].strip()
        self.label = None
        self.mn = ""
        self.ops = []
        self.mods = ""
        if t.endswith(":"):
            self.label = t[:-1]
            return
        if not t or t.startswith("."):
            return
        parts = t.split(None, 1)
        self.mn = parts[0]
        rest = parts[1] if len(parts) > 1 else ""
        ops, cur, depth = [], "", 0
        for ch in rest:
            if ch in "[(":
                depth += 1
            if ch in "])":
                depth -= 1
            if ch == "," and depth == 0:
                ops.append(cur.strip())
                cur = ""
            else:
                cur += ch
        if cur.strip():
            ops.append(cur.strip())
        if ops:
            sp = ops[-1].split(None, 1)
            ops[-1] = sp[0]
            self.mods = sp[1] if len(sp) > 1 else ""
        self.ops = ops
        self.classify()

    def classify(self):
        mn, ops = self.mn, self.ops
        base = re.sub(r"_(e32|e64|dpp|sdwa)$", "", mn)
        self.base = base
        self.is_mfma = base.startswith("v_mfma")
        self.is_valu = base.startswith("v_") and not self.is_mfma
        self.is_salu = base.startswith("s_") and not base.startswith(("s_load", "s_waitcnt", "s_nop", "s_barrier",
                                                                      "s_branch", "s_cbranch", "s_endpgm",
                                                                      "s_memtime", "s_memrealtime", "s_setprio",
                                                                      "s_sleep", "s_buffer_load"))
        self.is_vmem = base.startswith(("buffer_", "global_", "flat_"))
        self.is_ds = base.startswith("ds_")
        self.is_dpp = "quad_perm" in self.mods or "row_" in self.mods or mn.endswith("_dpp")
        self.is_trans = base in TRANS
        self.is_dot = base.startswith("v_dot")
        self.is_perml = base.startswith("v_permlane")
        self.is_lds_dma = self.is_vmem and (" lds" in " " + self.mods or "load_lds" in base)
        w, r = set(), set()
        R = [regs_of(o) for o in ops]
        if self.is_mfma:
            w |= R[0]
            self.A, self.B, self.C = R[1], R[2], R[3]
            r |= R[1] | R[2] | R[3]
            self.passes = 8 if "32x32" in base else 4
            self.D = R[0]
        elif self.is_valu:
            if base.startswith("v_cmp"):
                w |= R[0]
                for x in R[1:]:
                    r |= x
                if base.startswith("v_cmpx"):
                    w |= {"exec"}
            elif self.is_perml:
                w |= R[0] | R[1]
                r |= R[0] | R[1]
            elif base in ("v_add_co_u32", "v_sub_co_u32", "v_addc_co_u32", "v_subb_co_u32", "v_mad_u64_u32"):
                w |= R[0] | R[1]
                for x in R[2:]:
                    r |= x
            else:
                w |= R[0]
                for x in R[1:]:
                    r |= x
                if base.startswith(("v_fmac", "v_dot2c", "v_writelane", "v_pk_fmac")) or self.is_dpp:
                    r |= R[0]
                if base == "v_cndmask_b32" and len(ops) == 3:
                    r |= {"vcc"}
        elif self.is_vmem:
            if "store" in base or "atomic" in base:
                for x in R:
                    r |= x
            elif self.is_lds_dma:
                for x in R:
                    r |= x
                r |= {"m0"}
            else:
                w |= R[0]
                for x in R[1:]:
                    r |= x
        elif self.is_ds:
            if base.startswith(("ds_write", "ds_add", "ds_max")):
                for x in R:
                    r |= x
            else:
                w |= R[0]
                for x in R[1:]:
                    r |= x
        elif base.startswith("s_"):
            if base.startswith(("s_cmp", "s_cbranch", "s_branch", "s_waitcnt", "s_nop", "s_barrier", "s_endpgm",
                                "s_setprio", "s_sleep", "s_bitcmp")):
                for x in R:
                    r |= x
            else:
                if R:
                    w |= R[0]
                for x in R[1:]:
                    r |= x
                if "saveexec" in base:
                    w |= {"exec"}
                    r |= {"exec"}
        self.w, self.r = w, r
        self.wide_store = self.is_vmem and "store" in base and base.endswith(("x3", "x4"))
        if self.wide_store:
            self.store_data = R[0] if base.startswith("buffer") else R[1]

    def states(self):
        if self.mn == "s_nop":
            return int(self.ops[0], 0) + 1
        return 1 if self.mn else 0


def _isv(s):
    return {x for x in s if x[0] in "va" and x not in ("vcc",)}


def _iss(s):
    return {x for x in s if x[0] == "s" or x == "vcc"}


def need(p, c):
    n = 0
    if p.is_valu:
        pv = _isv(p.w)
        ps = _iss(p.w)
        if c.is_mfma and pv & c.r:
            n = max(n, 3 if p.is_dot else 2)
        if c.is_vmem and ps & c.r:
            n = max(n, 5)
        if c.is_valu and ps & c.r:
            n = max(n, 4 if c.base in ("v_readlane_b32", "v_writelane_b32") else 2)
        if c.is_valu and c.base in ("v_readlane_b32", "v_readfirstlane_b32") and pv & c.r:
            n = max(n, 1)
        if p.is_trans and c.is_valu and pv & c.r:
            n = max(n, 1)
        if p.is_trans and (c.is_vmem or c.is_ds) and pv & c.r:
            n = max(n, 1)
        if c.is_valu and (c.is_perml or c.is_dpp) and pv & c.r:
            n = max(n, 2)
        if p.is_dot:
            if c.is_dot and c.base == p.base:
                srcs = set()
                for o in c.ops[1:3]:
                    srcs |= regs_of(o)
                if pv & srcs:
                    n = max(n, 3)
            elif pv & (c.r | c.w):
                n = max(n, 3)
        if "exec" in p.w and (c.is_mfma or c.is_perml or c.is_dpp or c.base in ("v_readlane_b32", "v_readfirstlane_b32")):
            n = max(n, 5)
        if ("op_sel" in p.mods and not p.base.startswith("v_pk")) and c.is_valu and pv & c.r:
            n = max(n, 1)
        if ps and c.base.startswith("s_") and ps & c.r:
            n = max(n, 1)
    if p.is_mfma:
        big = 12 if p.passes == 8 else 8
        if c.is_mfma:
            if p.D & (c.A | c.B):
                n = max(n, big)
            if p.D & c.C:
                if not (p.D == c.C and p.passes == c.passes):
                    n = max(n, 10 if p.passes == 8 else 6)
            elif p.D & c.D:
                n = max(n, big)
        elif c.is_valu or c.is_vmem or c.is_ds:
            if p.D & (c.r | c.w):
                n = max(n, big)
        if c.is_valu and p.C & c.w:
            n = max(n, 7 if p.passes == 8 else 3)
        if (c.is_ds or c.is_vmem) and p.C & c.w:
            n = max(n, 7 if p.passes == 8 else 3)
    if p.is_salu and "m0" in p.w and c.is_lds_dma:
        n = max(n, 1)
    if p.mn and getattr(p, "wide_store", False) and (c.is_valu or c.is_mfma) and p.store_data & c.w:
        n = max(n, 2)
    if p.mn and getattr(p, "wide_store", False) and (c.is_ds or c.is_vmem) and p.store_data & c.w:
        n = max(n, 1)
    return n


def hazard_pass(lines):
    changed = True
    it = 0
    while changed:
        changed = False
        it += 1
        ins = [Ins(l) for l in lines]
        labels = {x.label: i for i, x in enumerate(ins) if x.label}
        preds_by_label = {}
        for i, x in enumerate(ins):
            if x.mn.startswith(("s_branch", "s_cbranch")) and x.ops and x.ops[0] in labels:
                preds_by_label.setdefault(labels[x.ops[0]], []).append(i)

        def short(ci, i, dist, depth=0):
            worst = 0
            c = ins[ci]
            while i >= 0 and dist < 20:
                p = ins[i]
                if p.label:
                    if depth < 3:
                        for b in preds_by_label.get(i, []):
                            worst = max(worst, short(ci, b, dist, depth + 1))
                    i -= 1
                    continue
                if p.mn in ("s_endpgm",):
                    return worst
                if p.mn == "s_branch" and dist > 0 and not (depth and i == start_i[0]):
                    pass
                if p.mn:
                    worst = max(worst, need(p, c) - dist)
                    dist += p.states()
                i -= 1
            return worst

        out = []
        for i, x in enumerate(ins):
            if x.mn and not changed:
                start_i = [i]
                s = short(i, i - 1, 0)
                if s > 0:
                    while s > 16:
                        out.append("    s_nop 15")
                        s -= 16
                    out.append(f"    s_nop {s - 1}")
                    changed = True
            out.append(lines[i])
        lines = out
        if it > 5000:
            raise RuntimeError("hazard pass does not converge")
    return lines


def hazard_pass_fast(lines):
    out = []
    hist = []
    for l in lines:
        x = Ins(l)
        if x.mn:
            dist, worst = 0, 0
            for p in reversed(hist):
                if dist >= 20:
                    break
                if p.mn == "s_endpgm":
                    break
                if p.mn:
                    worst = max(worst, need(p, x) - dist)
                    dist += p.states()
            while worst > 0:
                k = min(worst, 16)
                t = f"    s_nop {k - 1}"
                out.append(t)
                hist.append(Ins(t))
                worst -= k
        out.append(l)
        hist.append(x)
        if len(hist) > 64:
            hist = hist[-64:]
    return hazard_pass(out)


class Asm:
    def __init__(self):
        self.lines = []
        self.vm = []
        self.lg = []

    def __call__(self, text, tag=None, maybe=False):
        for l in text.split("\n"):
            l = l.strip()
            if not l:
                continue
            if l.endswith(":") or l.startswith("."):
                self.lines.append(l)
                continue
            self.lines.append("    " + l)
            mn = l.split()[0]
            if maybe:
                continue
            if mn.startswith(("buffer_", "global_")):
                self.vm.append(tag)
            elif mn.startswith("ds_"):
                self.lg.append(tag)

    def comment(self, t):
        self.lines.append("    ; " + t)

    def _count_after(self, lst, tags):
        if not isinstance(tags, (list, tuple, set)):
            tags = [tags]
        last = -1
        for i, t in enumerate(lst):
            if t in tags:
                last = i
        assert last >= 0, f"tag {tags} never issued"
        return len(lst) - 1 - last

    def wait(self, vm=None, lg=None):
        parts = []
        if vm is not None:
            n = self._count_after(self.vm, vm)
            n = min(n, 63)
            parts.append(f"vmcnt({n})")
        if lg is not None:
            n = min(self._count_after(self.lg, lg), 15)
            parts.append(f"lgkmcnt({n})")
        self("s_waitcnt " + " ".join(parts))

    def srd(self, d, lo, nbytes, add=0):
        if add:
            self(f"s_add_u32 s{d}, s{lo}, {add}\ns_addc_u32 s{d+1}, s{lo+1}, 0")
        else:
            self(f"s_mov_b32 s{d}, s{lo}\ns_mov_b32 s{d+1}, s{lo+1}")
        self(f"s_mov_b32 s{d+2}, {nbytes}\ns_mov_b32 s{d+3}, 0x20000")


def kernel_head(name):
    return [f".globl {name}", ".p2align 8", f".type {name},@function", f"{name}:"]


def kernel_desc(name, vgpr, sgpr=96, accum=None):
    if accum is None:
        accum = (vgpr + 3) // 4 * 4
    return [".p2align 6", f".amdhsa_kernel {name}", f"  .amdhsa_next_free_vgpr {vgpr}",
            f"  .amdhsa_next_free_sgpr {sgpr}", f"  .amdhsa_accum_offset {accum}",
            "  .amdhsa_group_segment_fixed_size 0", "  .amdhsa_kernarg_size 80",
            "  .amdhsa_user_sgpr_count 2", "  .amdhsa_user_sgpr_kernarg_segment_ptr 1",
            "  .amdhsa_system_sgpr_workgroup_id_x 1",
            "  .amdhsa_float_denorm_mode_32 3", "  .amdhsa_float_denorm_mode_16_64 3",
            ".end_amdhsa_kernel"]


def vr(a, n=1):
    return f"v{a}" if n == 1 else f"v[{a}:{a+n-1}]"


def sr(a, n=1):
    return f"s{a}" if n == 1 else f"s[{a}:{a+n-1}]"
```

```python
import sys
sys.path.insert(0, "dev")
from asmlib import *

S, D, H, DH, DF = 2048, 448, 16, 28, 1792
XB = S * D * 2
O_OFF = 0
H_OFF = 2 << 20
HH_OFF = 4 << 20
ST_OFF = 12 << 20
CS_OFF = 13 << 20
HHB = S * DF * 2
STB = 14 * S * 8
CSB = 2 * DF * 4
KA_X, KA_WQKV, KA_WO, KA_WG, KA_WU, KA_WD, KA_OUT, KA_WS = 0, 8, 16, 32, 40, 48, 56, 72
ONES_BF16 = 0x3F803F80


def lane_wave(a, vlane=1, swave=36):
    a(f"v_and_b32 v{vlane}, 63, v0")
    a(f"v_lshrrev_b32 v2, 6, v0")
    a(f"v_readfirstlane_b32 s{swave}, v2")


def gemm64(name, is_kb):
    a = Asm()
    K = D if is_kb else DF
    nch = K // 64
    pitchA = K * 2
    NS = 7
    a("s_load_dwordx2 s[4:5], s[0:1], %d" % KA_WS)
    a("s_load_dwordx2 s[6:7], s[0:1], %d" % (KA_WO if is_kb else KA_WD))
    a("s_load_dwordx2 s[8:9], s[0:1], %d" % (KA_X if is_kb else KA_OUT))
    if is_kb:
        a("s_load_dwordx4 s[12:15], s[0:1], %d" % KA_WG)
    lane_wave(a)
    a("s_cmp_ge_u32 s2, 224")
    a(f"s_cbranch_scc1 {name}_alt")
    a("s_and_b32 s37, s2, 7\ns_lshr_b32 s38, s2, 3\ns_and_b32 s39, s38, 3\ns_lshl_b32 s37, s37, 2\n"
      "s_add_u32 s37, s37, s39\ns_lshr_b32 s38, s38, 2")
    a("v_lshrrev_b32 v3, 3, v1\nv_and_b32 v4, 7, v1\nv_lshrrev_b32 v5, 1, v3")
    a("s_lshl_b32 s40, s37, 6\ns_lshl_b32 s41, s36, 4\ns_add_u32 s40, s40, s41")
    a(f"v_add_u32 v6, s40, v3\nv_mul_u32_u24 v6, {pitchA}, v6")
    a("v_xor_b32 v7, v4, v5\nv_lshl_add_u32 v10, v7, 4, v6")
    a(f"v_xor_b32 v7, 4, v7\nv_lshl_add_u32 v11, v7, 4, v6\nv_add_u32 v11, {8*pitchA - 1024}, v11")
    a("v_add_u32 v6, s41, v3\nv_mul_u32_u24 v6, 896, v6")
    a("v_and_b32 v7, 1, v5\nv_lshlrev_b32 v7, 2, v7\nv_xor_b32 v7, v4, v7\nv_lshl_add_u32 v12, v7, 4, v6")
    a("s_lshl_b32 s42, s38, 7\nv_add_u32 v12, s42, v12")
    a(f"v_add_u32 v13, {8*896 - 1024}, v12")
    a("s_lshl_b32 s43, s36, 12")
    a("s_and_b32 s44, s36, 1\ns_lshr_b32 s45, s36, 1")
    a("s_lshl_b32 s46, s37, 6\ns_lshl_b32 s47, s44, 5\ns_add_u32 s46, s46, s47")
    a("v_lshrrev_b32 v6, 2, v1\nv_add_u32 v8, s46, v6\nv_mul_u32_u24 v14, 896, v8")
    a("v_and_b32 v7, 3, v1\nv_lshl_add_u32 v14, v7, 4, v14")
    a("s_lshl_b32 s47, s45, 6\ns_add_u32 s47, s47, s42\nv_add_u32 v14, s47, v14")
    a(f"v_add_u32 v15, {16*896}, v14")
    a("s_waitcnt lgkmcnt(0)")
    a.srd(16, 4, XB if is_kb else HHB, O_OFF if is_kb else HH_OFF)
    a(f"s_sub_u32 s20, s6, 2048\ns_subb_u32 s21, s7, 0\ns_mov_b32 s22, {K*896 + 2048}\ns_mov_b32 s23, 0x20000")

    def dma(c):
        slot = c % NS
        a(f"s_add_u32 m0, s43, {slot*16384}")
        a(f"s_mov_b32 s48, {c*128}\ns_mov_b32 s49, {c*64*896}")
        a("buffer_load_dwordx4 v10, s[16:19], s48 offen lds", tag=("c", c))
        a("buffer_load_dwordx4 v11, s[16:19], s48 offen offset:1024 lds", tag=("c", c))
        a("buffer_load_dwordx4 v12, s[20:23], s49 offen offset:2048 lds", tag=("c", c))
        a("buffer_load_dwordx4 v13, s[20:23], s49 offen offset:3072 lds", tag=("c", c))

    npre = min(nch, NS if is_kb else NS - 1)
    dma(0)
    if is_kb:
        a.srd(24, 8, XB)
        a.srd(28, 4, XB, H_OFF)
        a.srd(32, 4, STB, ST_OFF)
    else:
        a.srd(24, 4, XB, H_OFF)
        a.srd(28, 8, XB)
    for c in range(1, npre):
        dma(c)
    a("buffer_load_dwordx4 v[64:67], v14, s[24:27], 0 offen", tag="res")
    a("buffer_load_dwordx4 v[68:71], v15, s[24:27], 0 offen", tag="res")
    a("v_and_b32 v3, 31, v1\nv_lshrrev_b32 v4, 5, v1")
    a("v_lshrrev_b32 v5, 4, v3\nv_lshlrev_b32 v5, 12, v5\nv_and_b32 v6, 15, v3\nv_lshl_add_u32 v5, v6, 7, v5")
    a("s_lshl_b32 s47, s44, 13\nv_add_u32 v5, s47, v5")
    a("v_lshrrev_b32 v6, 1, v3\nv_and_b32 v6, 7, v6\nv_xor_b32 v6, v6, v4")
    for s in range(4):
        a(f"v_xor_b32 v7, {2*s}, v6\nv_lshl_add_u32 v{72+s}, v7, 4, v5\nv_add_u32 v{77+s}, 0x10000, v{72+s}")
    a("v_bfe_u32 v3, v1, 2, 2\nv_lshl_add_u32 v5, v4, 3, v3\nv_lshlrev_b32 v5, 7, v5")
    a("v_bfe_u32 v6, v1, 4, 1\nv_lshlrev_b32 v6, 1, v6\nv_bfe_u32 v7, v1, 1, 1\nv_add_u32 v6, v6, v7")
    a("s_lshl_b32 s47, s45, 2\nv_add_u32 v6, s47, v6")
    a("v_lshrrev_b32 v7, 1, v3\nv_lshlrev_b32 v7, 2, v7\nv_xor_b32 v6, v6, v7")
    a("v_lshl_add_u32 v5, v6, 4, v5\nv_and_b32 v7, 1, v1\nv_lshl_add_u32 v76, v7, 3, v5")
    a("v_add_u32 v76, 2048, v76\nv_add_u32 v81, 0x10000, v76")

    for c in range(nch):
        slot = c % NS
        a.wait(vm=[("c", c)])
        a("s_barrier")
        if c + NS - 1 < nch and not is_kb:
            dma(c + NS - 1)
        hb, wb = (72, 76) if slot < 4 else (77, 81)
        so = (slot % 4) * 16384
        for s in range(4):
            a(f"ds_read_b128 v[{32+8*s}:{35+8*s}], v{hb+s} offset:{so}", tag=("f", c, s))
            a(f"ds_read_b64_tr_b16 v[{36+8*s}:{37+8*s}], v{wb} offset:{so + s*4096}", tag=("f", c, s))
            a(f"ds_read_b64_tr_b16 v[{38+8*s}:{39+8*s}], v{wb} offset:{so + s*4096 + 512}", tag=("f", c, s))
        for s in range(4):
            a.wait(lg=[("f", c, s)])
            cc = "0" if (c == 0 and s == 0) else "v[16:31]"
            a(f"v_mfma_f32_32x32x16_bf16 v[16:31], v[{36+8*s}:{39+8*s}], v[{32+8*s}:{35+8*s}], {cc}")
    eslot = (nch - 2) % NS
    a("v_and_b32 v3, 31, v1\nv_mul_u32_u24 v3, 80, v3\nv_lshl_add_u32 v3, v4, 3, v3")
    a(f"s_add_u32 s47, s43, {eslot*16384}\nv_add_u32 v3, s47, v3")
    a("v_lshrrev_b32 v5, 2, v1\nv_mul_u32_u24 v5, 80, v5\nv_and_b32 v6, 3, v1\nv_lshl_add_u32 v5, v6, 4, v5\n"
      "v_add_u32 v5, s47, v5")
    for g in range(4):
        a(f"v_cvt_pk_bf16_f32 v{32+2*g}, v{16+4*g}, v{17+4*g}\nv_cvt_pk_bf16_f32 v{33+2*g}, v{18+4*g}, v{19+4*g}")
        a(f"ds_write_b64 v3, v[{32+2*g}:{33+2*g}] offset:{16*g}", tag="ew")
    a.wait(lg="ew")
    a("ds_read_b128 v[40:43], v5", tag="er0")
    a(f"ds_read_b128 v[44:47], v5 offset:{16*80}", tag="er1")
    a("s_mov_b32 s50, 0xffff0000")
    if is_kb:
        a(f"s_mov_b32 s51, {ONES_BF16}")
        a(f"s_lshl_b32 s52, s38, 1\ns_add_u32 s52, s52, s45\ns_mul_i32 s52, s52, {S*8}")
        a("v_lshlrev_b32 v9, 3, v8")
    a.wait(vm="res")
    for i in range(2):
        a.wait(lg=f"er{i}")
        for j in range(4):
            d, r = 40 + 4*i + j, 64 + 4*i + j
            a(f"v_lshlrev_b32 v48, 16, v{d}\nv_and_b32 v49, s50, v{d}\nv_lshlrev_b32 v50, 16, v{r}\n"
              f"v_and_b32 v51, s50, v{r}\nv_add_f32 v48, v48, v50\nv_add_f32 v49, v49, v51\n"
              f"v_cvt_pk_bf16_f32 v{d}, v48, v49")
        a(f"buffer_store_dwordx4 v[{40+4*i}:{43+4*i}], v{14+i}, s[28:31], 0 offen")
        if is_kb:
            sm, sq = 52 + 2*i, 53 + 2*i
            a(f"v_mov_b32 v{sm}, 0\nv_mov_b32 v{sq}, 0")
            for j in range(4):
                d = 40 + 4*i + j
                a(f"v_dot2_f32_bf16 v{sm}, v{d}, s51, v{sm}\nv_dot2_f32_bf16 v{sq}, v{d}, v{d}, v{sq}")
            for qp in ("[1,0,3,2]", "[2,3,0,1]"):
                a(f"v_add_f32_dpp v{sm}, v{sm}, v{sm} quad_perm:{qp} row_mask:0xf bank_mask:0xf")
                a(f"v_add_f32_dpp v{sq}, v{sq}, v{sq} quad_perm:{qp} row_mask:0xf bank_mask:0xf")
    if is_kb:
        a("v_cmp_eq_u32 vcc, 0, v6\ns_and_saveexec_b64 s[54:55], vcc")
        a("buffer_store_dwordx2 v[52:53], v9, s[32:35], s52 offen")
        a("buffer_store_dwordx2 v[54:55], v9, s[32:35], s52 offen offset:128")
    a("s_endpgm")
    a(f"{name}_alt:")
    if is_kb:
        colsum(a, name)
    a("s_endpgm")
    return a.lines, 96


def colsum(a, name):
    a("s_cmp_ge_u32 s2, 252")
    a(f"s_cbranch_scc1 {name}_end")
    a("s_sub_u32 s37, s2, 224")
    a("s_waitcnt lgkmcnt(0)")
    a("s_cmp_ge_u32 s37, 14\ns_cselect_b32 s16, s14, s12\ns_cselect_b32 s17, s15, s13\n"
      "s_cselect_b32 s38, 14, 0")
    a(f"s_mov_b32 s18, {D*DF*2}\ns_mov_b32 s19, 0x20000")
    a.srd(20, 4, CSB, CS_OFF)
    a("s_sub_u32 s38, s37, s38\ns_lshl_b32 s38, s38, 8")
    a(f"v_lshrrev_b32 v3, 4, v1\ns_mul_i32 s39, s36, 112\nv_add_u32 v3, s39, v3\nv_mul_u32_u24 v3, {DF*2}, v3")
    a("v_and_b32 v4, 15, v1\nv_lshl_add_u32 v3, v4, 4, v3\nv_add_u32 v3, s38, v3")
    a("s_mov_b32 s50, 0xffff0000")
    for j in range(8):
        a(f"v_mov_b32 v{8+j}, 0")
    for half in range(2):
        for i in range(14):
            a(f"s_mov_b32 s40, {(half*14+i)*4*DF*2}")
            a(f"buffer_load_dwordx4 v[{24+4*i}:{27+4*i}], v3, s[16:19], s40 offen", tag=("cs", half, i))
        for i in range(14):
            a.wait(vm=[("cs", half, i)])
            for j in range(4):
                r = 24 + 4*i + j
                a(f"v_lshlrev_b32 v16, 16, v{r}\nv_and_b32 v17, s50, v{r}\n"
                  f"v_add_f32 v{8+2*j}, v{8+2*j}, v16\nv_add_f32 v{9+2*j}, v{9+2*j}, v17")
    a("v_lshlrev_b32 v5, 5, v0")
    a("ds_write_b128 v5, v[8:11]\nds_write_b128 v5, v[12:15] offset:16")
    a("s_waitcnt lgkmcnt(0)\ns_barrier")
    a("v_cmp_gt_u32 vcc, 128, v0\ns_and_saveexec_b64 s[54:55], vcc")
    a(f"s_cbranch_execz {name}_end")
    a("v_lshlrev_b32 v5, 2, v0")
    for i in range(16):
        a(f"ds_read_b32 v{24+i}, v5 offset:{i*512}")
    a("s_waitcnt lgkmcnt(0)")
    for st in (8, 4, 2, 1):
        for i in range(st):
            a(f"v_add_f32 v{24+i}, v{24+i}, v{24+i+st}")
    a("s_lshl_b32 s41, s37, 9")
    a("buffer_store_dword v24, v5, s[20:23], s41 offen")
    a(f"{name}_end:")


import math
def f32bits(x):
    import struct
    return struct.unpack("<I", struct.pack("<f", x))[0]

def kc_kernel(name):
    a = Asm()
    NT, NCH, NS = 7, 7, 3
    SLOT = 49152
    CSL = NS * SLOT
    ACC = 128
    WF = 32
    HF = 60
    a("s_load_dwordx2 s[4:5], s[0:1], %d" % KA_WS)
    a("s_load_dwordx4 s[12:15], s[0:1], %d" % KA_WG)
    lane_wave(a)
    a("s_cmp_ge_u32 s2, 256")
    a(f"s_cbranch_scc1 {name}_end")
    a("s_and_b32 s37, s2, 7\ns_lshr_b32 s38, s2, 3\ns_and_b32 s39, s38, 1\ns_lshl_b32 s37, s37, 1\n"
      "s_add_u32 s37, s37, s39\ns_lshr_b32 s38, s38, 1")
    a("s_lshl_b32 s40, s37, 7\ns_lshl_b32 s41, s36, 5\ns_add_u32 s40, s40, s41")
    a("v_lshrrev_b32 v3, 3, v1\nv_and_b32 v4, 7, v1\nv_lshrrev_b32 v5, 1, v3")
    a("v_add_u32 v6, s40, v3\nv_mul_u32_u24 v6, 896, v6")
    a("v_xor_b32 v7, v4, v5\nv_lshl_add_u32 v10, v7, 4, v6")
    a(f"v_xor_b32 v7, 4, v7\nv_lshl_add_u32 v11, v7, 4, v6\nv_add_u32 v11, {8*896-1024}, v11")
    a(f"v_add_u32 v12, {16*896-2048}, v10\nv_add_u32 v13, {16*896-2048}, v11")
    a("s_lshr_b32 s42, s36, 1\ns_and_b32 s43, s36, 1")
    a("v_lshrrev_b32 v3, 4, v1\ns_lshl_b32 s44, s42, 2\nv_or_b32 v4, s44, v3\nv_bfe_u32 v5, v1, 1, 3\n"
      "v_xor_b32 v4, v4, v5")
    a(f"s_lshl_b32 s44, s43, 2\nv_add_u32 v3, s44, v3\nv_mul_u32_u24 v14, {DF*2}, v3")
    a("v_lshl_add_u32 v14, v4, 5, v14\nv_and_b32 v5, 1, v1\nv_lshl_add_u32 v14, v5, 4, v14")
    a("s_mul_i32 s45, s38, 224\nv_add_u32 v14, s45, v14")
    a("v_cmp_eq_u32 vcc, 7, v4\nv_mov_b32 v5, 0x40000000\nv_cndmask_b32 v14, v14, v5, vcc")
    a(f"s_mul_i32 s46, s38, 448\nv_lshlrev_b32 v15, 4, v1\nv_add_u32 v15, s46, v15")
    a(f"v_add_u32 v6, {DF*4 - 448}, v15\nv_cmp_lt_u32 vcc, 27, v1\nv_cndmask_b32 v15, v15, v6, vcc")
    a("v_cmp_lt_u32 vcc, 55, v1\nv_cndmask_b32 v15, v15, v5, vcc")
    a(f"v_and_b32 v3, 31, v1\nv_lshrrev_b32 v4, 5, v1\nv_add_u32 v16, s40, v3\nv_lshlrev_b32 v16, 3, v16\n"
      f"v_lshl_add_u32 v16, v4, 14, v16")
    a("s_lshl_b32 s47, s36, 12")
    a("s_lshl_b32 s48, s42, 14\ns_lshl_b32 s49, s43, 10\ns_add_u32 s48, s48, s49\ns_add_u32 s48, s48, 16384")
    a("s_waitcnt lgkmcnt(0)")
    a.srd(16, 4, XB, H_OFF)
    a("s_cmp_eq_u32 s42, 0\ns_cselect_b32 s20, s12, s14\ns_cselect_b32 s21, s13, s15")
    a(f"s_mov_b32 s22, {D*DF*2}\ns_mov_b32 s23, 0x20000")
    a.srd(24, 4, CSB, CS_OFF)
    a.srd(28, 4, STB, ST_OFF)
    a(f"s_lshl_b32 s50, s36, 10\ns_add_u32 m0, s50, {CSL}")
    a("buffer_load_dwordx4 v15, s[24:27], 0 offen lds", tag="cs")
    for p in range(7):
        a(f"s_mov_b32 s51, {p*2*S*8}")
        a(f"buffer_load_dwordx2 v[{70+2*p}:{71+2*p}], v16, s[28:31], s51 offen", tag="st")

    def dma_ops(c):
        slot = c % NS
        ops = []
        ops.append(f"s_add_u32 m0, s47, {slot*SLOT}\ns_mov_b32 s52, {c*128}\n"
                   "buffer_load_dwordx4 v10, s[16:19], s52 offen lds")
        for i in range(1, 4):
            ops.append(f"s_add_u32 m0, s47, {slot*SLOT}\ns_mov_b32 s52, {c*128}\n"
                       f"buffer_load_dwordx4 v{10+i}, s[16:19], s52 offen offset:{1024*i} lds")
        for i in range(8):
            ops.append(f"s_add_u32 m0, s48, {slot*SLOT + i*2048}\ns_mov_b32 s53, {(c*64 + 8*i)*DF*2}\n"
                       "buffer_load_dwordx4 v14, s[20:23], s53 offen lds")
        return ops

    for c in range(NS):
        for op in dma_ops(c):
            a(op, tag=("c", c))
    a.srd(32, 4, HHB, HH_OFF)
    a("v_lshlrev_b32 v5, 7, v3\nv_add_u32 v5, s47, v5")
    a("v_lshrrev_b32 v6, 1, v3\nv_and_b32 v6, 7, v6\nv_xor_b32 v6, v6, v4")
    for s in range(4):
        a(f"v_xor_b32 v7, {2*s}, v6\nv_lshl_add_u32 v{20+s}, v7, 4, v5")
    a("v_bfe_u32 v5, v1, 2, 2\nv_bfe_u32 v6, v1, 4, 1\nv_lshl_add_u32 v7, v4, 3, v5\nv_lshlrev_b32 v7, 8, v7")
    a("v_lshl_add_u32 v7, v6, 14, v7\nv_and_b32 v8, 3, v1\nv_lshl_add_u32 v7, v8, 3, v7\nv_add_u32 v7, 16384, v7")
    a("v_lshl_add_u32 v5, v6, 2, v5")
    for t in range(NT):
        a(f"v_xor_b32 v8, {t}, v5\nv_lshl_add_u32 v{24+t}, v8, 5, v7")
    a.wait(vm="st")
    for p in range(1, 7):
        a(f"v_add_f32 v70, v70, v{70+2*p}\nv_add_f32 v71, v71, v{71+2*p}")
    a("v_mov_b32 v72, v70\nv_mov_b32 v73, v71")
    a("v_permlane32_swap_b32 v70, v72\nv_permlane32_swap_b32 v71, v73")
    a("v_add_f32 v70, v70, v72\nv_add_f32 v71, v71, v73")
    a(f"v_mul_f32 v70, {hex(f32bits(-1.0/D))}, v70")
    a(f"v_mul_f32 v71, {hex(f32bits(1.0/D))}, v71")
    a("v_fma_f32 v71, -v70, v70, v71")
    a(f"v_max_f32 v71, 0, v71\nv_add_f32 v74, {hex(f32bits(1e-5))}, v71")
    a("v_rsq_f32 v75, v74")
    k0 = -2.0 * math.sqrt(2.0 / math.pi) * math.log2(math.e)
    a(f"v_mul_f32 v76, {hex(f32bits(k0))}, v75")
    a("v_mul_f32 v77, v75, v75\nv_mul_f32 v77, v77, v76")
    a(f"v_mul_f32 v78, {hex(f32bits(0.044715))}, v77")
    a("v_mov_b32 v75, v74\nv_mov_b32 v77, v76\nv_mov_b32 v79, v78\nv_mov_b32 v71, v70")
    a(f"v_lshlrev_b32 v5, 4, v4\nv_add_u32 v5, s50, v5\nv_add_u32 v5, {CSL}, v5")
    for t in range(NT):
        for q in range(4):
            off = (q >> 1) * 448 + t * 64 + (q & 1) * 32
            a(f"ds_read_b128 v[{ACC+16*t+4*q}:{ACC+16*t+4*q+3}], v5 offset:{off}", tag=("ci", t))
        if t >= 2:
            a.wait(lg=[("ci", t-2)])
            for j in range(8):
                r = ACC + 16*(t-2) + 2*j
                a(f"v_pk_mul_f32 v[{r}:{r+1}], v[{r}:{r+1}], v[70:71]")
    for t in (NT-2, NT-1):
        a.wait(lg=[("ci", t)])
        for j in range(8):
            r = ACC + 16*t + 2*j
            a(f"v_pk_mul_f32 v[{r}:{r+1}], v[{r}:{r+1}], v[70:71]")

    def rd_w(c, s, t):
        o = s * 4096
        a(f"ds_read_b64_tr_b16 v[{WF+4*t}:{WF+4*t+1}], v{24+t} offset:{o}", tag=("w", c, s, t))
        a(f"ds_read_b64_tr_b16 v[{WF+4*t+2}:{WF+4*t+3}], v{24+t} offset:{o+1024}", tag=("w", c, s, t))
    def rd_h(c, s):
        b = HF + 4 * (s & 1)
        a(f"ds_read_b128 v[{b}:{b+3}], v{20+s}", tag=("h", c, s))
    def adv_addr(c):
        d = SLOT if c % NS else -(NS-1)*SLOT
        a(f"s_mov_b32 s54, {d & 0xffffffff}")
        for r in range(20, 24 + NT):
            a(f"v_add_u32 v{r}, s54, v{r}")
    a.wait(vm=[("c", 0)])
    a("s_barrier")
    rd_h(0, 0)
    for t in range(NT - 1):
        rd_w(0, 0, t)
    pend = []
    for c in range(NCH):
        for s in range(4):
            for t in range(NT):
                a.wait(lg=[("w", c, s, t), ("h", c, s)])
                b = HF + 4 * (s & 1)
                a(f"v_mfma_f32_32x32x16_bf16 v[{ACC+16*t}:{ACC+16*t+15}], v[{WF+4*t}:{WF+4*t+3}], v[{b}:{b+3}], "
                  f"v[{ACC+16*t}:{ACC+16*t+15}]")
                last = (s == 3)
                if t == 0:
                    rd_w(c, s, NT - 1)
                    if not last:
                        rd_h(c, s + 1)
                elif not last:
                    rd_w(c, s + 1, t - 1)
                elif c + 1 < NCH:
                    if t == 2:
                        a("s_waitcnt lgkmcnt(0)")
                        a.wait(vm=[("c", c + 1)])
                        a("s_barrier")
                        adv_addr(c + 1)
                        if c + NS < NCH:
                            pend = [(op, c + NS) for op in dma_ops(c + NS)]
                        rd_h(c + 1, 0)
                        rd_w(c + 1, 0, 0)
                        rd_w(c + 1, 0, 1)
                    elif t > 2:
                        rd_w(c + 1, 0, t - 1)
                if pend and (t % 2 == 1):
                    op, cc = pend.pop(0)
                    a(op, tag=("c", cc))
    assert not pend
    ES = ((NCH - 2) % NS) * SLOT + 16384
    a(f"v_mul_u32_u24 v5, 240, v3\nv_lshl_add_u32 v5, v4, 3, v5\ns_lshl_b32 s55, s36, 13\ns_add_u32 s55, s55, {ES}\n"
      "v_add_u32 v5, s55, v5")
    a(f"s_mul_i32 s56, s40, {DF*2}\ns_add_u32 s56, s56, s45")
    for i in range(7):
        a(f"v_add_u32 v6, {64*i}, v1\nv_mul_u32_u24 v7, 4682, v6\nv_lshrrev_b32 v7, 16, v7\n"
          f"v_mul_u32_u24 v8, 14, v7\nv_sub_u32 v8, v6, v8\nv_lshlrev_b32 v8, 4, v8\n"
          f"v_mul_u32_u24 v9, 240, v7\nv_add3_u32 v{10+i}, v9, v8, s55\n"
          f"v_mul_u32_u24 v9, {DF*2}, v7\nv_add_u32 v{20+i}, v9, v8")
    for t in range(NT):
        g0, u0 = ACC + 16*t, ACC + 16*t + 8
        T = 32
        for j in range(4):
            a(f"v_pk_mul_f32 v[{T+2*j}:{T+2*j+1}], v[{g0+2*j}:{g0+2*j+1}], v[{g0+2*j}:{g0+2*j+1}]")
        for j in range(4):
            a(f"v_pk_fma_f32 v[{T+2*j}:{T+2*j+1}], v[{T+2*j}:{T+2*j+1}], v[78:79], v[76:77]")
        for j in range(4):
            a(f"v_pk_mul_f32 v[{T+2*j}:{T+2*j+1}], v[{T+2*j}:{T+2*j+1}], v[{g0+2*j}:{g0+2*j+1}]")
        for j in range(8):
            a(f"v_exp_f32 v{T+j}, v{T+j}")
        for j in range(4):
            a(f"v_pk_mul_f32 v[{g0+2*j}:{g0+2*j+1}], v[{g0+2*j}:{g0+2*j+1}], v[{u0+2*j}:{u0+2*j+1}]")
        for j in range(4):
            a(f"v_pk_fma_f32 v[{T+2*j}:{T+2*j+1}], v[{T+2*j}:{T+2*j+1}], v[74:75], v[74:75]")
        for j in range(8):
            a(f"v_rcp_f32 v{T+j}, v{T+j}")
        for j in range(4):
            a(f"v_pk_mul_f32 v[{g0+2*j}:{g0+2*j+1}], v[{g0+2*j}:{g0+2*j+1}], v[{T+2*j}:{T+2*j+1}]")
        for j in range(4):
            a(f"v_cvt_pk_bf16_f32 v{u0+j}, v{g0+2*j}, v{g0+2*j+1}")
        a(f"ds_write_b64 v5, v[{u0}:{u0+1}] offset:{32*t}", tag="ew")
        a(f"ds_write_b64 v5, v[{u0+2}:{u0+3}] offset:{32*t+16}", tag="ew")
    a.wait(lg="ew")
    for i in range(7):
        a(f"ds_read_b128 v[{32+4*i}:{35+4*i}], v{10+i}", tag=("er", i))
    for i in range(7):
        a.wait(lg=[("er", i)])
        a(f"buffer_store_dwordx4 v[{32+4*i}:{35+4*i}], v{20+i}, s[32:35], s56 offen")
    a(f"{name}_end:")
    a("s_endpgm")
    return a.lines, 240, NS * SLOT + 4096


def ka_kernel(name):
    a = Asm()
    NCH = 7
    WB = 98304
    MISC = WB + 49152
    LDS = MISC + 512 + 4096
    X, WF = 20, 68
    KACC, VACC, QACC, CSACC = 124, 148, 172, 180
    ST, ONES = 184, 190
    NEG = hex(f32bits(-1e30))
    a("s_load_dwordx4 s[4:7], s[0:1], %d" % KA_X)
    a("s_load_dwordx2 s[8:9], s[0:1], %d" % KA_WS)
    lane_wave(a)
    a("s_cmp_ge_u32 s2, 256")
    a(f"s_cbranch_scc1 {name}_end")
    a("s_and_b32 s37, s2, 7\ns_lshr_b32 s38, s2, 3\ns_and_b32 s39, s38, 1\ns_lshl_b32 s37, s37, 1\n"
      "s_add_u32 s37, s37, s39\ns_lshr_b32 s38, s38, 1")
    a("s_and_b32 s40, s36, 3\ns_lshr_b32 s41, s36, 2")
    a("v_lshrrev_b32 v3, 2, v1\ns_lshl_b32 s42, s40, 4\nv_add_u32 v3, s42, v3\nv_mul_u32_u24 v11, 2688, v3")
    a("v_bfe_u32 v4, v1, 1, 1\nv_lshrrev_b32 v5, 5, v1\nv_xor_b32 v4, v4, v5\nv_lshl_add_u32 v11, v4, 5, v11")
    a("v_and_b32 v4, 1, v1\nv_lshl_add_u32 v11, v4, 4, v11\ns_mul_i32 s42, s38, 56\nv_add_u32 v11, s42, v11")
    a("s_mul_i32 s43, s41, 896\ns_add_u32 s43, s43, 896\nv_add_u32 v10, s43, v11")
    a(f"s_lshl_b32 s44, s40, 10\ns_add_u32 s44, s44, {WB}")
    a("s_lshl_b32 s45, s41, 12\ns_add_u32 s45, s45, s44\ns_add_u32 s45, s45, 4096")
    a("v_lshrrev_b32 v3, 3, v1\nv_and_b32 v4, 7, v1\nv_lshrrev_b32 v5, 1, v3")
    a("s_lshl_b32 s46, s36, 4\nv_add_u32 v6, s46, v3\nv_mul_u32_u24 v6, 896, v6")
    a("v_xor_b32 v7, v4, v5\nv_lshl_add_u32 v12, v7, 4, v6")
    a(f"v_xor_b32 v7, 4, v7\nv_lshl_add_u32 v13, v7, 4, v6\nv_add_u32 v13, {8*896-1024}, v13")
    for j in range(3):
        a(f"s_add_u32 s47, s37, {j}\ns_sub_u32 s48, s47, 2\ns_mul_i32 s48, s48, 114688\ns_cmp_ge_u32 s47, 2\n"
          f"s_cselect_b32 s{60+j}, s48, 0x40000000")
    a("s_mul_i32 s49, s36, 12288")
    a("s_waitcnt lgkmcnt(0)")
    a.srd(16, 4, XB)
    a.srd(20, 6, D * 3 * D * 2)

    def w_dma(c):
        slot = c % 4
        a(f"s_mov_b32 s51, {c*64*2688}")
        a(f"s_cmp_lg_u32 s41, {c & 1}\ns_cbranch_scc1 {name}_wq{c}")
        a(f"s_add_u32 m0, s44, {slot*12288}")
        a("buffer_load_dwordx4 v11, s[20:23], s51 offen lds", maybe=True)
        a(f"{name}_wq{c}:")
        a(f"s_add_u32 m0, s45, {slot*12288}")
        a("buffer_load_dwordx4 v10, s[20:23], s51 offen lds", tag=("w", c))

    def x_ops(c):
        ops = []
        for j in range(3):
            ops.append(f"s_add_u32 m0, s49, {(c & 1)*6144 + j*2048}\ns_add_u32 s52, s{60+j}, {c*128}\n"
                       "buffer_load_dwordx4 v12, s[16:19], s52 offen lds\n"
                       "buffer_load_dwordx4 v13, s[16:19], s52 offen offset:1024 lds")
        return ops

    w_dma(0)
    for op in x_ops(0):
        a(op, tag=("x", 0))
    w_dma(1)
    for op in x_ops(1):
        a(op, tag=("x", 1))
    w_dma(2)
    w_dma(3)
    a.srd(24, 8, XB, O_OFF)
    a("v_and_b32 v3, 15, v1\nv_lshrrev_b32 v4, 4, v1")
    a("v_lshlrev_b32 v5, 7, v3\nv_add_u32 v5, s49, v5\nv_lshrrev_b32 v6, 1, v3\nv_xor_b32 v6, v6, v4")
    a("v_lshl_add_u32 v14, v6, 4, v5\nv_xor_b32 v6, 4, v6\nv_lshl_add_u32 v15, v6, 4, v5")
    a("v_bfe_u32 v5, v1, 2, 2\nv_lshl_add_u32 v5, v4, 3, v5\nv_lshlrev_b32 v5, 6, v5\nv_and_b32 v6, 3, v1\n"
      f"v_lshl_add_u32 v5, v6, 3, v5\nv_add_u32 v5, {WB}, v5\nv_and_b32 v6, 1, v4")
    a("v_lshl_add_u32 v16, v6, 5, v5\nv_xor_b32 v6, 1, v6\nv_lshl_add_u32 v17, v6, 5, v5")
    a("s_sub_u32 s53, s36, 6\ns_cmp_lt_u32 s36, 6\ns_cselect_b32 s53, s36, s53\ns_lshr_b32 s54, s53, 1\n"
      "s_lshl_b32 s54, s54, 12\ns_and_b32 s55, s53, 1\ns_lshl_b32 s55, s55, 5")
    a("v_xor_b32 v18, s55, v16\nv_add_u32 v18, s54, v18")
    for i in range(4):
        a(f"v_mov_b32 v{ONES+i}, {ONES_BF16}")
    for i in range(6):
        a(f"v_mov_b32 v{ST+i}, 0")
    a(f"s_mov_b32 s56, {ONES_BF16}")

    def rd_x(c):
        for s in range(2):
            for j in range(3):
                r = X + (c & 1)*24 + (s*3 + j)*4
                a(f"ds_read_b128 v[{r}:{r+3}], v{14+s} offset:{(c & 1)*6144 + j*2048}", tag=("xf", c, s))
    def rd_w(c, s):
        base = (c % 4)*12288 + s*2048
        for m in (1, 2, 0):
            for t in range(2):
                r = WF + s*28 + (m*2 + t)*4
                a(f"ds_read_b64_tr_b16 v[{r}:{r+1}], v{16+t} offset:{base + m*4096}", tag=("wf", c, s, m))
                a(f"ds_read_b64_tr_b16 v[{r+2}:{r+3}], v{16+t} offset:{base + m*4096 + 256}", tag=("wf", c, s, m))
        r = WF + s*28 + 24
        a(f"ds_read_b64_tr_b16 v[{r}:{r+1}], v18 offset:{base}", tag=("wf", c, s, 3))
        a(f"ds_read_b64_tr_b16 v[{r+2}:{r+3}], v18 offset:{base + 256}", tag=("wf", c, s, 3))
    def mm(d, A, B, first):
        a(f"v_mfma_f32_16x16x32_bf16 v[{d}:{d+3}], v[{A}:{A+3}], v[{B}:{B+3}], " + ("0" if first else f"v[{d}:{d+3}]"))
    def compute(c, s, fill):
        first = (c == 0 and s == 0)
        xf = lambda j: X + (c & 1)*24 + (s*3 + j)*4
        wf = lambda m, t: WF + s*28 + (m*2 + t)*4
        dots = []
        for j in range(3):
            for i in range(4):
                dots.append(f"v_dot2_f32_bf16 v{ST+2*j}, v{xf(j)+i}, s56, v{ST+2*j}")
                dots.append(f"v_dot2_f32_bf16 v{ST+2*j+1}, v{xf(j)+i}, v{xf(j)+i}, v{ST+2*j+1}")
        def after():
            for _ in range(2):
                if dots:
                    a(dots.pop(0))
        n = 0
        a.wait(lg=[("xf", c, s), ("wf", c, s, 1)])
        for t in range(2):
            for j in range(3):
                mm(KACC + 8*j + 4*t, wf(1, t), xf(j), first); after()
        if fill: fill()
        a.wait(lg=[("wf", c, s, 2)])
        for t in range(2):
            for j in range(3):
                mm(VACC + 8*j + 4*t, xf(j), wf(2, t), first); after()
        if fill: fill()
        a.wait(lg=[("wf", c, s, 0)])
        for t in range(2):
            mm(QACC + 4*t, wf(0, t), xf(2), first)
        if fill: fill()
        a.wait(lg=[("wf", c, s, 3)])
        mm(CSACC, ONES, WF + s*28 + 24, first)
        assert not dots

    a.wait(vm=[("x", 0), ("w", 0)])
    a("s_barrier")
    rd_x(0)
    rd_w(0, 0)
    for c in range(NCH):
        a.wait(lg=[("xf", c, 1)])
        pend = x_ops(c + 2) if c + 2 < NCH else []
        def fill():
            if pend:
                a(pend.pop(0), tag=("x", c + 2))
        rd_w(c, 1)
        compute(c, 0, fill)
        assert not pend
        if c + 1 < NCH:
            a("s_waitcnt lgkmcnt(0)")
            a.wait(vm=[("x", c + 1), ("w", c + 1)])
            a("s_barrier")
            if c + 4 < NCH:
                w_dma(c + 4)
            rd_x(c + 1)
            rd_w(c + 1, 0)
        compute(c, 1, None)

    for i in range(6):
        a(f"v_mov_b32 v{20+i}, v{ST+i}")
    for i in range(6):
        a(f"v_permlane16_swap_b32 v{ST+i}, v{20+i}")
    for i in range(6):
        a(f"v_add_f32 v{ST+i}, v{ST+i}, v{20+i}")
    for i in range(6):
        a(f"v_mov_b32 v{20+i}, v{ST+i}")
    for i in range(6):
        a(f"v_permlane32_swap_b32 v{ST+i}, v{20+i}")
    for i in range(6):
        a(f"v_add_f32 v{ST+i}, v{ST+i}, v{20+i}")
    a(f"s_lshl_b32 s57, s53, 6\ns_add_u32 s57, s57, {MISC}\nv_lshlrev_b32 v5, 2, v3\nv_add_u32 v6, s57, v5")
    a(f"ds_write_b32 v6, v{CSACC}")
    for j in range(3):
        sm, sq = ST + 2*j, ST + 2*j + 1
        a(f"v_mul_f32 v{sm}, {hex(f32bits(-1.0/D))}, v{sm}\nv_mul_f32 v{sq}, {hex(f32bits(1.0/D))}, v{sq}")
        a(f"v_fma_f32 v{sq}, -v{sm}, v{sm}, v{sq}\nv_max_f32 v{sq}, 0, v{sq}\nv_add_f32 v{sq}, {hex(f32bits(1e-5))}, v{sq}")
        a(f"v_rsq_f32 v{sq}, v{sq}")
        a(f"v_mul_f32 v{sm}, v{sm}, v{sq}")
    a(f"s_lshl_b32 s58, s36, 9\ns_add_u32 s58, s58, {MISC+512}\nv_add_u32 v6, s58, v5\nv_lshlrev_b32 v7, 4, v4\n"
      "v_add_u32 v8, s58, v7")
    for i in range(6):
        a(f"ds_write_b32 v6, v{ST+i} offset:{64*i}")
    a("s_waitcnt lgkmcnt(0)")
    a("s_barrier")
    for i in range(6):
        a(f"ds_read_b128 v[{20+4*i}:{23+4*i}], v8 offset:{64*i}", tag="sv")
    a(f"v_add_u32 v7, {MISC}, v7\nv_add_u32 v5, {MISC}, v5")
    for i in range(4):
        a(f"ds_read_b128 v[{44+4*i}:{47+4*i}], v7 offset:{64*i}", tag="csr")
    a("ds_read_b32 v60, v5 offset:256\nds_read_b32 v61, v5 offset:320", tag="csr")
    a(f"s_lshl_b32 s59, s36, 11\ns_add_u32 s59, s59, {WB}\nv_lshlrev_b32 v9, 4, v1\nv_add_u32 v9, s59, v9\n"
      "v_lshlrev_b32 v19, 3, v1\nv_add_u32 v19, s59, v19")
    a("v_cmp_eq_u32 s[64:65], 12, v3\nv_cmp_lt_u32 s[66:67], 47, v1")
    a.wait(lg="csr")
    for j in range(3):
        b, aa = ST + 2*j, ST + 2*j + 1
        for t in range(2):
            for r in range(4):
                a(f"v_mul_f32 v62, v{b}, v{52+4*t+r}\nv_fma_f32 v{KACC+8*j+4*t+r}, v{KACC+8*j+4*t+r}, v{aa}, v62")
        for i in range(4):
            a(f"v_cvt_pk_bf16_f32 v{64+i}, v{KACC+8*j+2*i}, v{KACC+8*j+2*i+1}")
        a(f"ds_write_b128 v9, v[64:67] offset:{j*16384}")
        for t in range(2):
            for r in range(4):
                a(f"v_mul_f32 v62, v{20+8*j+r}, v{60+t}\nv_fma_f32 v{VACC+8*j+4*t+r}, v{VACC+8*j+4*t+r}, v{24+8*j+r}, v62")
        for i in range(4):
            a(f"v_cvt_pk_bf16_f32 v{68+i}, v{VACC+8*j+2*i}, v{VACC+8*j+2*i+1}")
        a(f"v_cndmask_b32 v70, v70, v{ONES}, s[64:65]\nv_cndmask_b32 v71, v71, v{ONES}, s[64:65]")
        a(f"ds_write_b64 v19, v[68:69] offset:{j*16384+1024}\nds_write_b64 v19, v[70:71] offset:{j*16384+1536}")
    QF, OA, BIA = 196, 200, 208
    csc = DH ** -0.5 * math.log2(math.e)
    a(f"v_mul_f32 v63, {hex(f32bits(csc))}, v{ST+4}\nv_mul_f32 v72, {hex(f32bits(csc))}, v{ST+5}")
    for t in range(2):
        for r in range(4):
            a(f"v_mul_f32 v62, v63, v{44+4*t+r}\nv_fma_f32 v{QACC+4*t+r}, v{QACC+4*t+r}, v72, v62")
    for i in range(4):
        a(f"v_cvt_pk_bf16_f32 v{QF+i}, v{QACC+2*i}, v{QACC+2*i+1}")
    a(f"v_cndmask_b32 v{QF+2}, v{QF+2}, 0, s[66:67]\nv_cndmask_b32 v{QF+3}, v{QF+3}, 0, s[66:67]")
    a(f"v_mov_b32 v62, {NEG}\nv_lshlrev_b32 v63, 2, v4")
    for r in range(4):
        a(f"v_add_u32 v72, {r}, v63\nv_cmp_gt_u32 vcc, v72, v3\nv_cndmask_b32 v{BIA+r}, v62, 0, vcc\n"
          f"v_cndmask_b32 v{BIA+4+r}, 0, v62, vcc")
    a("s_waitcnt lgkmcnt(0)")
    a("s_barrier")
    SS, KF, PP = 20, 88, 160
    for j in range(17):
        a(f"ds_read_b128 v[{KF+4*j}:{KF+4*j+3}], v9 offset:{j*2048}", tag=("kf", j))
    for j in range(17):
        a.wait(lg=[("kf", j)])
        cc = f"v[{BIA}:{BIA+3}]" if j == 0 else (f"v[{BIA+4}:{BIA+7}]" if j == 16 else "0")
        a(f"v_mfma_f32_16x16x32_bf16 v[{SS+4*j}:{SS+4*j+3}], v[{KF+4*j}:{KF+4*j+3}], v[{QF}:{QF+3}], {cc}")
    for j in range(17):
        for t in range(2):
            r = KF + (j >> 1)*8 + t*4 + (j & 1)*2
            a(f"ds_read_b64 v[{r}:{r+1}], v19 offset:{j*2048 + 1024 + t*512}", tag=("vf", j))
    a(f"s_lshl_b32 s47, s37, 3\ns_add_u32 s47, s47, s36\ns_cmp_ge_u32 s47, 16\ns_cbranch_scc1 {name}_valid")
    a("s_sub_u32 s47, 16, s47")
    for j in range(16):
        for r in range(4):
            a(f"v_mov_b32 v{SS+4*j+r}, {NEG}")
        if j < 15:
            a(f"s_cmp_le_u32 s47, {j+1}\ns_cbranch_scc1 {name}_valid")
    a(f"{name}_valid:")
    M = 216
    a(f"v_max3_f32 v{M}, v{SS}, v{SS+1}, v{SS+2}\nv_max3_f32 v{M+1}, v{SS+3}, v{SS+4}, v{SS+5}")
    rest = list(range(SS + 6, SS + 68))
    k = 0
    while rest:
        x0 = rest.pop(0); x1 = rest.pop(0)
        a(f"v_max3_f32 v{M+k}, v{M+k}, v{x0}, v{x1}")
        k ^= 1
    a(f"v_max_f32 v{M}, v{M}, v{M+1}\nv_mov_b32 v{M+1}, v{M}\nv_permlane16_swap_b32 v{M}, v{M+1}\n"
      f"v_max_f32 v{M}, v{M}, v{M+1}\nv_mov_b32 v{M+1}, v{M}\nv_permlane32_swap_b32 v{M}, v{M+1}\n"
      f"v_max_f32 v{M}, v{M}, v{M+1}")
    for p in range(9):
        tiles = [2*p, 2*p+1] if p < 8 else [16]
        for j in tiles:
            for r in range(4):
                a(f"v_sub_f32 v{SS+4*j+r}, v{SS+4*j+r}, v{M}")
        for j in tiles:
            for r in range(4):
                a(f"v_exp_f32 v{SS+4*j+r}, v{SS+4*j+r}")
        for j in tiles:
            a(f"v_cvt_pk_bf16_f32 v{PP+2*j}, v{SS+4*j}, v{SS+4*j+1}\nv_cvt_pk_bf16_f32 v{PP+2*j+1}, v{SS+4*j+2}, v{SS+4*j+3}")
        a.wait(lg=[("vf", tiles[-1])])
        for t in range(2):
            r = KF + p*8 + t*4
            cc = "0" if p == 0 else f"v[{OA+4*t}:{OA+4*t+3}]"
            if p < 8:
                a(f"v_mfma_f32_16x16x32_bf16 v[{OA+4*t}:{OA+4*t+3}], v[{r}:{r+3}], v[{PP+4*p}:{PP+4*p+3}], {cc}")
            else:
                a(f"v_mfma_f32_16x16x16_bf16 v[{OA+4*t}:{OA+4*t+3}], v[{r}:{r+1}], v[{PP+4*p}:{PP+4*p+1}], {cc}")
    a("s_lshl_b32 s47, s37, 7\ns_add_u32 s47, s47, s46\nv_add_u32 v5, s47, v3\nv_mul_u32_u24 v5, 896, v5\n"
      "v_lshl_add_u32 v5, v4, 3, v5")
    a(f"v_mov_b32 v{M}, v{OA+4}\nv_mov_b32 v{M+1}, v{OA+4}\nv_permlane32_swap_b32 v{M}, v{M+1}\n"
      f"v_mov_b32 v{M}, v{M+1}\nv_permlane16_swap_b32 v{M}, v{M+1}\nv_rcp_f32 v{M+1}, v{M+1}")
    for i in range(8):
        a(f"v_mul_f32 v{OA+i}, v{OA+i}, v{M+1}")
    for i in range(4):
        a(f"v_cvt_pk_bf16_f32 v{20+i}, v{OA+2*i}, v{OA+2*i+1}")
    a("buffer_store_dwordx2 v[20:21], v5, s[24:27], s42 offen")
    a("s_andn2_b64 exec, exec, s[66:67]")
    a("buffer_store_dwordx2 v[22:23], v5, s[24:27], s42 offen offset:32")
    a(f"{name}_end:")
    a("s_endpgm")
    return a.lines, 224, LDS


def build(kernels, path):
    ref = open("sequential_preLN__sliding_block__glu_gated_geglu__prompt.s.ref").read()
    head = [l for l in ref.split("\n") if l.startswith(";") and "@launch" not in l and "Override" not in l
            and "grid=ceil" not in l]
    out = list(head)
    for label, _, _, grid, block, lds in kernels:
        out.append(f"; @launch kernel={label} grid=({grid},1,1) block=({block},1,1) lds={lds}")
    out.append('.amdgcn_target "amdgcn-amd-amdhsa--gfx950"')
    out.append(".text")
    seen = set()
    for label, lines, vg, *_ in kernels:
        if label in seen:
            continue
        seen.add(label)
        out += kernel_head(label)
        out += hazard_pass_fast(lines)
    out.append('.section .rodata,"a"')
    seen = set()
    for label, lines, vg, *_ in kernels:
        if label in seen:
            continue
        seen.add(label)
        out += kernel_desc(label, vg)
    open(path, "w").write("\n".join(out) + "\n")


if __name__ == "__main__":
    ka, kav, kal = ka_kernel("ka_kernel")
    kb, kbv = gemm64("kb_kernel", True)
    kd, kdv = gemm64("kd_kernel", False)
    kc, kcv, kcl = kc_kernel("kc_kernel")
    out = sys.argv[1] if len(sys.argv) > 1 else "t_all.s"
    build([("ka_kernel", ka, kav, 256, 512, kal), ("kb_kernel", kb, kbv, 256, 256, 114688),
           ("kc_kernel", kc, kcv, 256, 256, kcl), ("kd_kernel", kd, kdv, 224, 256, 114688)], out)
```

```python
import re

_REG = re.compile(r"^(-|abs\(|\|)?([vas])(?:(\d+)|\[(\d+):(\d+)\])\)?\|?$")


def regs_of(tok):
    tok = tok.strip()
    m = _REG.match(tok)
    if m:
        f = m.group(2)
        if m.group(3) is not None:
            return {f + m.group(3)}
        return {f + str(i) for i in range(int(m.group(4)), int(m.group(5)) + 1)}
    if tok in ("vcc", "vcc_lo", "vcc_hi"):
        return {"vcc"}
    if tok in ("exec", "exec_lo", "exec_hi"):
        return {"exec"}
    if tok == "m0":
        return {"m0"}
    return set()


TRANS = ("v_exp_f32", "v_log_f32", "v_rcp_f32", "v_rsq_f32", "v_sqrt_f32", "v_sin_f32", "v_cos_f32",
         "v_rcp_iflag_f32")


class Ins:
    def __init__(self, text):
        self.text = text
        t = text.split(";")[0].strip()
        self.label = None
        self.mn = ""
        self.ops = []
        self.mods = ""
        if t.endswith(":"):
            self.label = t[:-1]
            return
        if not t or t.startswith("."):
            return
        parts = t.split(None, 1)
        self.mn = parts[0]
        rest = parts[1] if len(parts) > 1 else ""
        ops, cur, depth = [], "", 0
        for ch in rest:
            if ch in "[(":
                depth += 1
            if ch in "])":
                depth -= 1
            if ch == "," and depth == 0:
                ops.append(cur.strip())
                cur = ""
            else:
                cur += ch
        if cur.strip():
            ops.append(cur.strip())
        if ops:
            sp = ops[-1].split(None, 1)
            ops[-1] = sp[0]
            self.mods = sp[1] if len(sp) > 1 else ""
        self.ops = ops
        self.classify()

    def classify(self):
        mn, ops = self.mn, self.ops
        base = re.sub(r"_(e32|e64|dpp|sdwa)$", "", mn)
        self.base = base
        self.is_mfma = base.startswith("v_mfma")
        self.is_valu = base.startswith("v_") and not self.is_mfma
        self.is_salu = base.startswith("s_") and not base.startswith(("s_load", "s_waitcnt", "s_nop", "s_barrier",
                                                                      "s_branch", "s_cbranch", "s_endpgm",
                                                                      "s_memtime", "s_memrealtime", "s_setprio",
                                                                      "s_sleep", "s_buffer_load"))
        self.is_vmem = base.startswith(("buffer_", "global_", "flat_"))
        self.is_ds = base.startswith("ds_")
        self.is_dpp = "quad_perm" in self.mods or "row_" in self.mods or mn.endswith("_dpp")
        self.is_trans = base in TRANS
        self.is_dot = base.startswith("v_dot")
        self.is_perml = base.startswith("v_permlane")
        self.is_lds_dma = self.is_vmem and (" lds" in " " + self.mods or "load_lds" in base)
        w, r = set(), set()
        R = [regs_of(o) for o in ops]
        if self.is_mfma:
            w |= R[0]
            self.A, self.B, self.C = R[1], R[2], R[3]
            r |= R[1] | R[2] | R[3]
            self.passes = 8 if "32x32" in base else 4
            self.D = R[0]
        elif self.is_valu:
            if base.startswith("v_cmp"):
                w |= R[0]
                for x in R[1:]:
                    r |= x
                if base.startswith("v_cmpx"):
                    w |= {"exec"}
            elif self.is_perml:
                w |= R[0] | R[1]
                r |= R[0] | R[1]
            elif base in ("v_add_co_u32", "v_sub_co_u32", "v_addc_co_u32", "v_subb_co_u32", "v_mad_u64_u32"):
                w |= R[0] | R[1]
                for x in R[2:]:
                    r |= x
            elif not R:
                pass
            else:
                w |= R[0]
                for x in R[1:]:
                    r |= x
                if base.startswith(("v_fmac", "v_dot2c", "v_writelane", "v_pk_fmac")) or self.is_dpp:
                    r |= R[0]
                if base == "v_cndmask_b32" and len(ops) == 3:
                    r |= {"vcc"}
        elif self.is_vmem:
            if "store" in base or "atomic" in base:
                for x in R:
                    r |= x
            elif self.is_lds_dma:
                for x in R:
                    r |= x
                r |= {"m0"}
            else:
                w |= R[0]
                for x in R[1:]:
                    r |= x
        elif self.is_ds:
            if base.startswith(("ds_write", "ds_add", "ds_max")):
                for x in R:
                    r |= x
            else:
                w |= R[0]
                for x in R[1:]:
                    r |= x
        elif base.startswith("s_"):
            if base.startswith(("s_cmp", "s_cbranch", "s_branch", "s_waitcnt", "s_nop", "s_barrier", "s_endpgm",
                                "s_setprio", "s_sleep", "s_bitcmp")):
                for x in R:
                    r |= x
            else:
                if R:
                    w |= R[0]
                for x in R[1:]:
                    r |= x
                if "saveexec" in base:
                    w |= {"exec"}
                    r |= {"exec"}
        self.w, self.r = w, r
        self.wide_store = self.is_vmem and "store" in base and base.endswith(("x3", "x4"))
        if self.wide_store:
            self.store_data = R[0] if base.startswith("buffer") else R[1]

    def states(self):
        if self.mn == "s_nop":
            return int(self.ops[0], 0) + 1
        return 1 if self.mn else 0


def _isv(s):
    return {x for x in s if x[0] in "va" and x not in ("vcc",)}


def _iss(s):
    return {x for x in s if x[0] == "s" or x == "vcc"}


def need(p, c):
    n = 0
    if p.is_valu:
        pv = _isv(p.w)
        ps = _iss(p.w)
        if c.is_mfma and pv & c.r:
            n = max(n, 3 if p.is_dot else 2)
        if c.is_vmem and ps & c.r:
            n = max(n, 5)
        if c.is_valu and ps & c.r:
            n = max(n, 4 if c.base in ("v_readlane_b32", "v_writelane_b32") else 2)
        if c.is_valu and c.base in ("v_readlane_b32", "v_readfirstlane_b32") and pv & c.r:
            n = max(n, 1)
        if p.is_trans and c.is_valu and pv & c.r:
            n = max(n, 1)
        if p.is_trans and (c.is_vmem or c.is_ds) and pv & c.r:
            n = max(n, 1)
        if c.is_valu and (c.is_perml or c.is_dpp) and pv & c.r:
            n = max(n, 2)
        if p.is_dot:
            if c.is_dot and c.base == p.base:
                srcs = set()
                for o in c.ops[1:3]:
                    srcs |= regs_of(o)
                if pv & srcs:
                    n = max(n, 3)
            elif pv & (c.r | c.w):
                n = max(n, 3)
        if "exec" in p.w and (c.is_mfma or c.is_perml or c.is_dpp or c.base in ("v_readlane_b32", "v_readfirstlane_b32")):
            n = max(n, 5)
        if ("op_sel" in p.mods and not p.base.startswith("v_pk")) and c.is_valu and pv & c.r:
            n = max(n, 1)
        if ps and c.base.startswith("s_") and ps & c.r:
            n = max(n, 1)
    if p.is_mfma:
        big = 12 if p.passes == 8 else 8
        if c.is_mfma:
            if p.D & (c.A | c.B):
                n = max(n, big)
            if p.D & c.C:
                if not (p.D == c.C and p.passes == c.passes):
                    n = max(n, 10 if p.passes == 8 else 6)
            elif p.D & c.D:
                n = max(n, big)
        elif c.is_valu or c.is_vmem or c.is_ds:
            if p.D & (c.r | c.w):
                n = max(n, big)
        if c.is_valu and p.C & c.w:
            n = max(n, 7 if p.passes == 8 else 3)
        if (c.is_ds or c.is_vmem) and p.C & c.w:
            n = max(n, 7 if p.passes == 8 else 3)
    if p.is_salu and "m0" in p.w and c.is_lds_dma:
        n = max(n, 1)
    if p.mn and getattr(p, "wide_store", False) and (c.is_valu or c.is_mfma) and p.store_data & c.w:
        n = max(n, 2)
    if p.mn and getattr(p, "wide_store", False) and (c.is_ds or c.is_vmem) and p.store_data & c.w:
        n = max(n, 1)
    return n


def hazard_pass(lines):
    changed = True
    it = 0
    while changed:
        changed = False
        it += 1
        ins = [Ins(l) for l in lines]
        labels = {x.label: i for i, x in enumerate(ins) if x.label}
        preds_by_label = {}
        for i, x in enumerate(ins):
            if x.mn.startswith(("s_branch", "s_cbranch")) and x.ops and x.ops[0] in labels:
                preds_by_label.setdefault(labels[x.ops[0]], []).append(i)

        def short(ci, i, dist, depth=0):
            worst = 0
            c = ins[ci]
            while i >= 0 and dist < 20:
                p = ins[i]
                if p.label:
                    if depth < 3:
                        for b in preds_by_label.get(i, []):
                            worst = max(worst, short(ci, b, dist, depth + 1))
                    i -= 1
                    continue
                if p.mn in ("s_endpgm",):
                    return worst
                if p.mn == "s_branch" and dist > 0 and not (depth and i == start_i[0]):
                    pass
                if p.mn:
                    worst = max(worst, need(p, c) - dist)
                    dist += p.states()
                i -= 1
            return worst

        out = []
        for i, x in enumerate(ins):
            if x.mn and not changed:
                start_i = [i]
                s = short(i, i - 1, 0)
                if s > 0:
                    while s > 16:
                        out.append("    s_nop 15")
                        s -= 16
                    out.append(f"    s_nop {s - 1}")
                    changed = True
            out.append(lines[i])
        lines = out
        if it > 5000:
            raise RuntimeError("hazard pass does not converge")
    return lines


def hazard_pass_fast(lines):
    out = []
    hist = []
    for l in lines:
        x = Ins(l)
        if x.mn:
            dist, worst = 0, 0
            for p in reversed(hist):
                if dist >= 20:
                    break
                if p.mn == "s_endpgm":
                    break
                if p.mn:
                    worst = max(worst, need(p, x) - dist)
                    dist += p.states()
            while worst > 0:
                k = min(worst, 16)
                t = f"    s_nop {k - 1}"
                out.append(t)
                hist.append(Ins(t))
                worst -= k
        out.append(l)
        hist.append(x)
        if len(hist) > 64:
            hist = hist[-64:]
    return hazard_pass(out)


class Asm:
    def __init__(self):
        self.lines = []
        self.vm = []
        self.lg = []

    def __call__(self, text, tag=None, maybe=False):
        for l in text.split("\n"):
            l = l.strip()
            if not l:
                continue
            if l.endswith(":") or l.startswith("."):
                self.lines.append(l)
                continue
            self.lines.append("    " + l)
            mn = l.split()[0]
            if maybe:
                continue
            if mn.startswith(("buffer_", "global_")):
                self.vm.append(tag)
            elif mn.startswith("ds_"):
                self.lg.append(tag)

    def comment(self, t):
        self.lines.append("    ; " + t)

    def _count_after(self, lst, tags):
        if not isinstance(tags, (list, tuple, set)):
            tags = [tags]
        last = -1
        for i, t in enumerate(lst):
            if t in tags:
                last = i
        assert last >= 0, f"tag {tags} never issued"
        return len(lst) - 1 - last

    def wait(self, vm=None, lg=None):
        parts = []
        if vm is not None:
            n = self._count_after(self.vm, vm)
            n = min(n, 62)
            parts.append(f"vmcnt({n})")
        if lg is not None:
            n = min(self._count_after(self.lg, lg), 14)
            parts.append(f"lgkmcnt({n})")
        self("s_waitcnt " + " ".join(parts))

    def srd(self, d, lo, nbytes, add=0):
        if add:
            self(f"s_add_u32 s{d}, s{lo}, {add}\ns_addc_u32 s{d+1}, s{lo+1}, 0")
        else:
            self(f"s_mov_b32 s{d}, s{lo}\ns_mov_b32 s{d+1}, s{lo+1}")
        self(f"s_mov_b32 s{d+2}, {nbytes}\ns_mov_b32 s{d+3}, 0x20000")


def kernel_head(name):
    return [f".globl {name}", ".p2align 8", f".type {name},@function", f"{name}:"]


def kernel_desc(name, vgpr, sgpr=102, accum=None):
    if accum is None:
        accum = (vgpr + 3) // 4 * 4
    return [".p2align 6", f".amdhsa_kernel {name}", f"  .amdhsa_next_free_vgpr {vgpr}",
            f"  .amdhsa_next_free_sgpr {sgpr}", f"  .amdhsa_accum_offset {accum}",
            "  .amdhsa_group_segment_fixed_size 0", "  .amdhsa_kernarg_size 80",
            "  .amdhsa_user_sgpr_count 2", "  .amdhsa_user_sgpr_kernarg_segment_ptr 1",
            "  .amdhsa_system_sgpr_workgroup_id_x 1",
            "  .amdhsa_float_denorm_mode_32 3", "  .amdhsa_float_denorm_mode_16_64 3",
            ".end_amdhsa_kernel"]


def vr(a, n=1):
    return f"v{a}" if n == 1 else f"v[{a}:{a+n-1}]"


def sr(a, n=1):
    return f"s{a}" if n == 1 else f"s[{a}:{a+n-1}]"
```

```python
import sys, math, struct
sys.path.insert(0, "dev")
from asmlib import *

S, D, H, DH, DF = 2048, 448, 16, 28, 1792
XB = S * D * 2
O_OFF = 0
H_OFF = 2 << 20
HH_OFF = 4 << 20
ST_OFF = 12 << 20
CS_OFF = 13 << 20
HHB = S * DF * 2
STB = 14 * S * 8
CSB = 2 * DF * 4
WFB = D * DF * 2
KA_X, KA_WQKV, KA_WO, KA_WG, KA_WU, KA_WD, KA_OUT, KA_WS = 0, 8, 16, 32, 40, 48, 56, 72
ONES_BF16 = 0x3F803F80
OOB = 0x40000000
DBG_OFF = 32 << 20


class Cfg:
    stamp = False
    opts = {}


def opt(name, default):
    return Cfg.opts.get(name, default)


def f32bits(x):
    return struct.unpack("<I", struct.pack("<f", x))[0]


def fx(x):
    return hex(f32bits(x))


def stamp(a, i):
    if Cfg.stamp:
        a(f"s_memtime s[{70+2*i}:{71+2*i}]")


def stamp_rt(a, i):
    if Cfg.stamp:
        a(f"s_memrealtime s[{70+2*i}:{71+2*i}]")


def stamp_begin(a):
    if Cfg.stamp:
        stamp_rt(a, 0)
        stamp(a, 1)


def stamp_flush(a, kidx, n=12):
    if not Cfg.stamp:
        return
    a("s_mov_b64 exec, -1")
    a("s_waitcnt vmcnt(0) lgkmcnt(0)")
    a(f"s_memtime s[{70+2*(n-2)}:{71+2*(n-2)}]")
    a(f"s_memrealtime s[{70+2*(n-1)}:{71+2*(n-1)}]")
    a("s_load_dwordx2 s[68:69], s[0:1], 72")
    a("s_waitcnt lgkmcnt(0)")
    a.srd(96, 68, 1 << 20, DBG_OFF + (kidx << 20))
    a("s_lshl_b32 s3, s2, 4\ns_add_u32 s3, s3, s36\ns_lshl_b32 s3, s3, 6")
    for i in range(n):
        a(f"v_mov_b32 v{4+i}, s{70+2*i}")
    a("v_mov_b32 v3, 0\ns_mov_b64 exec, 1")
    for i in range(0, n, 4):
        a(f"buffer_store_dwordx4 v[{4+i}:{7+i}], v3, s[96:99], s3 offen offset:{4*i}")


def lane_wave(a, vlane=1, swave=36):
    a(f"v_and_b32 v{vlane}, 63, v0")
    a(f"v_lshrrev_b32 v2, 6, v0")
    a(f"v_readfirstlane_b32 s{swave}, v2")
```

```python
from common import *

def gemm64(name, is_kb):
    a = Asm()
    K = D if is_kb else DF
    nch = K // 64
    pitchA = K * 2
    NS, LA = 7, 4
    kidx = 1 if is_kb else 3
    stamp_begin(a)
    a("s_load_dwordx2 s[4:5], s[0:1], %d" % KA_WS)
    a("s_load_dwordx2 s[6:7], s[0:1], %d" % (KA_WO if is_kb else KA_WD))
    a("s_load_dwordx2 s[8:9], s[0:1], %d" % (KA_X if is_kb else KA_OUT))
    if is_kb:
        a("s_load_dwordx4 s[12:15], s[0:1], %d" % KA_WG)
    lane_wave(a)
    a("s_cmp_ge_u32 s2, 224")
    a(f"s_cbranch_scc1 {name}_alt")
    a("s_and_b32 s57, s2, 7\ns_lshr_b32 s58, s2, 3\ns_and_b32 s39, s58, 3\ns_lshl_b32 s37, s57, 2\n"
      "s_add_u32 s37, s37, s39\ns_lshr_b32 s38, s58, 2")
    a("s_lshl_b32 s42, s38, 7")
    a("s_cmp_lt_u32 s36, 4")
    a(f"s_cbranch_scc1 {name}_cons")
    if opt("prio", 0):
        a("s_setprio 3")
    a("s_sub_u32 s59, s36, 4")
    a("v_lshrrev_b32 v3, 3, v1\nv_and_b32 v4, 7, v1\nv_lshrrev_b32 v5, 1, v3")
    a("s_lshl_b32 s40, s37, 6\ns_lshl_b32 s41, s59, 4\ns_add_u32 s40, s40, s41")
    a(f"v_add_u32 v6, s40, v3\nv_mul_u32_u24 v6, {pitchA}, v6")
    a("v_xor_b32 v7, v4, v5\nv_lshl_add_u32 v10, v7, 4, v6")
    a(f"v_xor_b32 v7, 4, v7\nv_lshl_add_u32 v11, v7, 4, v6\nv_add_u32 v11, {8*pitchA - 1024}, v11")
    a("v_add_u32 v6, s41, v3\nv_mul_u32_u24 v6, 896, v6")
    a("v_and_b32 v7, 1, v5\nv_lshlrev_b32 v7, 2, v7\nv_xor_b32 v7, v4, v7\nv_lshl_add_u32 v12, v7, 4, v6")
    a("v_add_u32 v12, s42, v12")
    a(f"v_add_u32 v13, {8*896 - 1024}, v12")
    a("s_lshl_b32 s43, s59, 12")
    if opt("rot", 0):
        if is_kb:
            a("s_lshl_b32 s44, s39, 1\ns_add_u32 s44, s44, s38\ns_sub_u32 s45, s44, 7\ns_cmp_ge_u32 s44, 7\n"
              "s_cselect_b32 s44, s45, s44")
        else:
            a("s_lshl_b32 s44, s38, 2\ns_mul_i32 s45, s39, 7\ns_add_u32 s44, s44, s45\ns_sub_u32 s45, s44, 28\n"
              "s_cmp_ge_u32 s44, 28\ns_cselect_b32 s44, s45, s44")
    else:
        a("s_mov_b32 s44, 0")
    a(f"s_lshl_b32 s48, s44, 7\ns_mul_i32 s49, s44, {64*896}")
    a("s_waitcnt lgkmcnt(0)")
    stamp(a, 2)
    a.srd(16, 4, XB if is_kb else HHB, O_OFF if is_kb else HH_OFF)
    a(f"s_sub_u32 s20, s6, 2048\ns_subb_u32 s21, s7, 0\ns_mov_b32 s22, {K*896 + 2048}\ns_mov_b32 s23, 0x20000")

    def dma(m0expr):
        a(m0expr)
        a("buffer_load_dwordx4 v10, s[16:19], s48 offen lds")
        a("buffer_load_dwordx4 v11, s[16:19], s48 offen offset:1024 lds")
        a("buffer_load_dwordx4 v12, s[20:23], s49 offen offset:2048 lds")
        a("buffer_load_dwordx4 v13, s[20:23], s49 offen offset:3072 lds")
        a(f"s_add_u32 s48, s48, 128\ns_add_u32 s49, s49, {64*896}\ns_cmp_eq_u32 s48, {nch*128}\n"
          "s_cselect_b32 s48, 0, s48\ns_cselect_b32 s49, 0, s49")
    for c in range(LA):
        dma(f"s_add_u32 m0, s43, {c*16384}")
    stamp(a, 3)
    a(f"s_add_u32 s46, s43, {LA*16384}\ns_add_u32 s47, s43, {NS*16384}\ns_mov_b32 s45, {nch-LA}")
    a(f"{name}_lloop:")
    a(f"s_waitcnt vmcnt({4*(LA-1)})\ns_barrier")
    dma("s_mov_b32 m0, s46")
    a("s_add_u32 s46, s46, 16384\ns_cmp_eq_u32 s46, s47\ns_cselect_b32 s46, s43, s46")
    a(f"s_sub_u32 s45, s45, 1\ns_cmp_lg_u32 s45, 0\ns_cbranch_scc1 {name}_lloop")
    stamp(a, 4)
    npf = 0
    if is_kb and opt("kb_pf", 0):
        npf = kb_prefetch(a)
    for i in range(LA):
        a(f"s_waitcnt vmcnt({4*(LA-1-i) + npf})\ns_barrier")
    stamp(a, 5)
    stamp_flush(a, kidx)
    a("s_endpgm")
    a(f"{name}_cons:")
    a("s_and_b32 s44, s36, 1\ns_lshr_b32 s45, s36, 1")
    a("s_lshl_b32 s46, s37, 6\ns_lshl_b32 s47, s44, 5\ns_add_u32 s46, s46, s47")
    a("v_lshrrev_b32 v6, 2, v1\nv_add_u32 v8, s46, v6\nv_mul_u32_u24 v14, 896, v8")
    a("v_and_b32 v7, 3, v1\nv_lshl_add_u32 v14, v7, 4, v14")
    a("s_lshl_b32 s47, s45, 6\ns_add_u32 s47, s47, s42\nv_add_u32 v14, s47, v14")
    a(f"v_add_u32 v15, {16*896}, v14")
    a("s_waitcnt lgkmcnt(0)")
    stamp(a, 2)
    if is_kb:
        a.srd(24, 8, XB)
    else:
        a.srd(24, 4, XB, H_OFF)
    RES = 96
    a(f"buffer_load_dwordx4 v[{RES}:{RES+3}], v14, s[24:27], 0 offen", tag="res")
    a(f"buffer_load_dwordx4 v[{RES+4}:{RES+7}], v15, s[24:27], 0 offen", tag="res")
    if is_kb:
        a.srd(28, 4, XB, H_OFF)
        a.srd(32, 4, STB, ST_OFF)
    else:
        a.srd(28, 8, XB)
    HA, WA = 104, 108
    a("v_and_b32 v3, 31, v1\nv_lshrrev_b32 v4, 5, v1")
    a("v_lshrrev_b32 v5, 4, v3\nv_lshlrev_b32 v5, 12, v5\nv_and_b32 v6, 15, v3\nv_lshl_add_u32 v5, v6, 7, v5")
    a("s_lshl_b32 s47, s44, 13\nv_add_u32 v5, s47, v5")
    a("v_lshrrev_b32 v6, 1, v3\nv_and_b32 v6, 7, v6\nv_xor_b32 v6, v6, v4")
    for s in range(4):
        a(f"v_xor_b32 v7, {2*s}, v6\nv_lshl_add_u32 v{HA+s}, v7, 4, v5\nv_add_u32 v{HA+5+s}, 0x10000, v{HA+s}")
    EP = NS * 16384
    a(f"s_mul_i32 s47, s36, 2560\ns_add_u32 s47, s47, {EP}")
    a("v_mul_u32_u24 v10, 80, v3\nv_lshl_add_u32 v10, v4, 3, v10\nv_add_u32 v10, s47, v10")
    a("v_lshrrev_b32 v11, 2, v1\nv_mul_u32_u24 v11, 80, v11\nv_and_b32 v12, 3, v1\nv_lshl_add_u32 v11, v12, 4, v11\n"
      "v_add_u32 v11, s47, v11")
    a("v_bfe_u32 v3, v1, 2, 2\nv_lshl_add_u32 v5, v4, 3, v3\nv_lshlrev_b32 v5, 7, v5")
    a("v_bfe_u32 v6, v1, 4, 1\nv_lshlrev_b32 v6, 1, v6\nv_bfe_u32 v7, v1, 1, 1\nv_add_u32 v6, v6, v7")
    a("s_lshl_b32 s47, s45, 2\nv_add_u32 v6, s47, v6")
    a("v_lshrrev_b32 v7, 1, v3\nv_lshlrev_b32 v7, 2, v7\nv_xor_b32 v6, v6, v7")
    a(f"v_lshl_add_u32 v5, v6, 4, v5\nv_and_b32 v7, 1, v1\nv_lshl_add_u32 v{WA}, v7, 3, v5")
    a(f"v_add_u32 v{WA}, 2048, v{WA}\nv_add_u32 v{WA+5}, 0x10000, v{WA}")
    a("s_mov_b32 s50, 0xffff0000")
    if is_kb:
        a(f"s_mov_b32 s51, {ONES_BF16}")
        a(f"s_lshl_b32 s52, s38, 1\ns_add_u32 s52, s52, s45\ns_mul_i32 s52, s52, {S*8}")
        a("v_lshlrev_b32 v9, 3, v8")
        a("v_cmp_eq_u32 s[54:55], 0, v12")
    a.wait(vm="res")
    for j in range(8):
        a(f"v_lshlrev_b32 v{114+2*j}, 16, v{RES+j}\nv_and_b32 v{115+2*j}, s50, v{RES+j}")
    stamp(a, 3)

    def mfmas(c):
        fb = 32 + 32 * (c & 1)
        for s in range(4):
            a.wait(lg=[("f", c, s)])
            cc = "0" if (c == 0 and s == 0) else "v[16:31]"
            a(f"v_mfma_f32_32x32x16_bf16 v[16:31], v[{fb+4+8*s}:{fb+7+8*s}], v[{fb+8*s}:{fb+3+8*s}], {cc}")
    for c in range(nch):
        slot = c % NS
        if c:
            a("s_waitcnt lgkmcnt(0)")
        a("s_barrier")
        if c == 0: stamp(a, 4)
        if c == 1: stamp(a, 5)
        if c == nch // 2: stamp(a, 6)
        if c == nch - 1: stamp(a, 7)
        hb, wb = (HA, WA) if slot < 4 else (HA + 5, WA + 5)
        so = (slot % 4) * 16384
        fb = 32 + 32 * (c & 1)
        for s in range(4):
            a(f"ds_read_b128 v[{fb+8*s}:{fb+3+8*s}], v{hb+s} offset:{so}", tag=("f", c, s))
            a(f"ds_read_b64_tr_b16 v[{fb+4+8*s}:{fb+5+8*s}], v{wb} offset:{so + s*4096}", tag=("f", c, s))
            a(f"ds_read_b64_tr_b16 v[{fb+6+8*s}:{fb+7+8*s}], v{wb} offset:{so + s*4096 + 512}", tag=("f", c, s))
            if c and s == 1:
                pass
        if c:
            fbp = 32 + 32 * ((c - 1) & 1)
            for s in range(4):
                cc = "0" if (c == 1 and s == 0) else "v[16:31]"
                a(f"v_mfma_f32_32x32x16_bf16 v[16:31], v[{fbp+4+8*s}:{fbp+7+8*s}], v[{fbp+8*s}:{fbp+3+8*s}], {cc}")
    mfmas(nch - 1)
    stamp(a, 8)
    for g in range(4):
        a(f"v_cvt_pk_bf16_f32 v{32+2*g}, v{16+4*g}, v{17+4*g}\nv_cvt_pk_bf16_f32 v{33+2*g}, v{18+4*g}, v{19+4*g}")
        a(f"ds_write_b64 v10, v[{32+2*g}:{33+2*g}] offset:{16*g}", tag="ew")
    a.wait(lg="ew")
    a("ds_read_b128 v[40:43], v11", tag="er0")
    a(f"ds_read_b128 v[44:47], v11 offset:{16*80}", tag="er1")
    for i in range(2):
        a.wait(lg=f"er{i}")
        for j in range(4):
            d, r = 40 + 4*i + j, 114 + 2*(4*i + j)
            a(f"v_lshlrev_b32 v48, 16, v{d}\nv_and_b32 v49, s50, v{d}\n"
              f"v_add_f32 v48, v48, v{r}\nv_add_f32 v49, v49, v{r+1}\n"
              f"v_cvt_pk_bf16_f32 v{d}, v48, v49")
        a(f"buffer_store_dwordx4 v[{40+4*i}:{43+4*i}], v{14+i}, s[28:31], 0 offen")
    if is_kb:
        for i in range(2):
            sm, sq = 52 + 2*i, 53 + 2*i
            for j in range(4):
                d = 40 + 4*i + j
                c0, c1 = ("0", "0") if j == 0 else (f"v{sm}", f"v{sq}")
                a(f"v_dot2_f32_bf16 v{sm}, v{d}, s51, {c0}\nv_dot2_f32_bf16 v{sq}, v{d}, v{d}, {c1}")
        for qp in ("[1,0,3,2]", "[2,3,0,1]"):
            for r in range(52, 56):
                a(f"v_add_f32_dpp v{r}, v{r}, v{r} quad_perm:{qp} row_mask:0xf bank_mask:0xf")
        a("s_mov_b64 exec, s[54:55]")
        a("buffer_store_dwordx2 v[52:53], v9, s[32:35], s52 offen")
        a("buffer_store_dwordx2 v[54:55], v9, s[32:35], s52 offen offset:128")
    stamp(a, 9)
    stamp_flush(a, kidx)
    a("s_endpgm")
    a(f"{name}_alt:")
    if is_kb:
        colsum(a, name)
    a("s_endpgm")
    return a.lines, 132, NS * 16384 + 4 * 2560


def kb_prefetch(a):
    nf = opt("kc_nf", 8)
    groups = 16 // nf
    lines = nf * 224 // 128
    a("s_and_b32 s60, s59, 1\ns_cmp_eq_u32 s60, 0\ns_cselect_b32 s24, s12, s14\ns_cselect_b32 s25, s13, s15")
    a(f"s_mov_b32 s26, {WFB}\ns_mov_b32 s27, 0x20000")
    a(f"s_lshl_b32 s60, s58, 4\ns_lshr_b32 s61, s59, 1\ns_lshl_b32 s61, s61, 3\ns_add_u32 s60, s60, s61\n"
      f"s_mul_i32 s60, s60, {DF*2}")
    a(f"s_and_b32 s61, s57, {groups-1}\ns_mul_i32 s61, s61, {nf*224}\ns_add_u32 s60, s60, s61")
    lpr = {7: 8, 14: 16, 28: 32}[lines]
    sh = {8: 3, 16: 4, 32: 5}[lpr]
    a(f"v_lshrrev_b32 v3, {sh}, v1\nv_mul_u32_u24 v3, {DF*2}, v3\nv_and_b32 v4, {lpr-1}, v1\n"
      f"v_lshl_add_u32 v3, v4, 7, v3\nv_mov_b32 v5, {OOB}\nv_cmp_le_u32 vcc, {lines}, v4\nv_cndmask_b32 v3, v3, v5, vcc")
    rpi = 64 // lpr
    n = 8 // rpi
    for i in range(n):
        a(f"buffer_load_dword v20, v3, s[24:27], s60 offen")
        if i + 1 < n:
            a(f"s_add_u32 s60, s60, {rpi*DF*2}")
    return n


def colsum(a, name):
    a("s_cmp_ge_u32 s2, 252")
    a(f"s_cbranch_scc1 {name}_end")
    a("s_sub_u32 s37, s2, 224")
    a("s_cmp_ge_u32 s37, 14\ns_cselect_b32 s38, 14, 0")
    a("s_sub_u32 s38, s37, s38\ns_lshl_b32 s38, s38, 8")
    a(f"v_lshrrev_b32 v3, 4, v1\ns_mul_i32 s39, s36, 56\nv_add_u32 v3, s39, v3\nv_mul_u32_u24 v3, {DF*2}, v3")
    a("v_and_b32 v4, 15, v1\nv_lshl_add_u32 v3, v4, 4, v3\nv_add_u32 v3, s38, v3")
    a("s_waitcnt lgkmcnt(0)")
    a("s_cmp_ge_u32 s37, 14\ns_cselect_b32 s16, s14, s12\ns_cselect_b32 s17, s15, s13")
    a(f"s_mov_b32 s18, {WFB}\ns_mov_b32 s19, 0x20000")
    for i in range(14):
        a(f"s_mov_b32 s40, {i*4*DF*2}")
        a(f"buffer_load_dwordx4 v[{24+4*i}:{27+4*i}], v3, s[16:19], s40 offen", tag=("cs", i))
    a.srd(20, 4, CSB, CS_OFF)
    a("s_mov_b32 s50, 0xffff0000")
    for i in range(14):
        a.wait(vm=[("cs", i)])
        for j in range(4):
            r = 24 + 4*i + j
            if i == 0:
                a(f"v_lshlrev_b32 v{8+2*j}, 16, v{r}\nv_and_b32 v{9+2*j}, s50, v{r}")
            else:
                a(f"v_lshlrev_b32 v16, 16, v{r}\nv_and_b32 v17, s50, v{r}\n"
                  f"v_add_f32 v{8+2*j}, v{8+2*j}, v16\nv_add_f32 v{9+2*j}, v{9+2*j}, v17")
    a("v_lshlrev_b32 v5, 5, v0")
    a("ds_write_b128 v5, v[8:11]\nds_write_b128 v5, v[12:15] offset:16")
    a("s_waitcnt lgkmcnt(0)\ns_barrier")
    a("s_cmp_ge_u32 s36, 2")
    a(f"s_cbranch_scc1 {name}_end")
    a("v_lshlrev_b32 v5, 2, v0")
    for i in range(32):
        a(f"ds_read_b32 v{24+i}, v5 offset:{i*512}")
    a("s_waitcnt lgkmcnt(0)")
    for st in (16, 8, 4, 2, 1):
        for i in range(st):
            a(f"v_add_f32 v{24+i}, v{24+i}, v{24+i+st}")
    a("s_lshl_b32 s41, s37, 9")
    a("buffer_store_dword v24, v5, s[20:23], s41 offen")
    stamp_flush(a, 1)
    a(f"{name}_end:")
```

```python
from common import *

def ka_kernel(name):
    a = Asm()
    NCH = 7
    LA = opt("ka_la", 4)
    WB = 6 * 16384
    MISC = WB + 3 * 12288
    LDS = MISC + 512 + 8192
    NEG = fx(-1e30)
    nh = opt("ka_nh", 16)
    groups, nr = 16 // nh, 32 // nh
    lg = lambda x: x.bit_length() - 1
    stamp_begin(a)
    a("s_load_dwordx4 s[4:7], s[0:1], %d" % KA_X)
    a("s_load_dwordx2 s[8:9], s[0:1], %d" % KA_WS)
    a("s_load_dwordx2 s[10:11], s[0:1], %d" % KA_WO)
    a("s_load_dwordx4 s[12:15], s[0:1], %d" % KA_WG)
    a("s_load_dwordx2 s[28:29], s[0:1], %d" % KA_WD)
    lane_wave(a)
    a("s_cmp_ge_u32 s2, 256")
    a(f"s_cbranch_scc1 {name}_end")
    a("s_and_b32 s57, s2, 7\ns_lshr_b32 s63, s2, 3")
    a(f"s_lshr_b32 s37, s57, {lg(groups)}\ns_lshl_b32 s37, s37, {lg(nr)}\ns_and_b32 s39, s63, {nr-1}\n"
      "s_add_u32 s37, s37, s39")
    a(f"s_and_b32 s38, s57, {groups-1}\ns_lshl_b32 s38, s38, {lg(nh)}\ns_lshr_b32 s40, s63, {lg(nr)}\n"
      "s_add_u32 s38, s38, s40")
    a("s_mul_i32 s42, s38, 56")
    a("s_cmp_lt_u32 s36, 8")
    a(f"s_cbranch_scc1 {name}_cons")
    a("s_sub_u32 s40, s36, 8")
    if opt("prio", 0):
        a("s_setprio 3")
    a("v_lshrrev_b32 v3, 2, v1\ns_lshl_b32 s41, s40, 4\nv_add_u32 v3, s41, v3\nv_mul_u32_u24 v10, 2688, v3")
    a("v_bfe_u32 v4, v1, 1, 1\nv_lshrrev_b32 v5, 5, v1\nv_xor_b32 v4, v4, v5\nv_lshl_add_u32 v10, v4, 5, v10")
    a("v_and_b32 v4, 1, v1\nv_lshl_add_u32 v10, v4, 4, v10\nv_add_u32 v10, s42, v10")
    a(f"s_lshl_b32 s44, s40, 10\ns_add_u32 s44, s44, {WB}")
    a("v_lshrrev_b32 v3, 3, v1\nv_and_b32 v4, 7, v1\nv_lshrrev_b32 v5, 1, v3")
    a("s_lshl_b32 s46, s40, 5\nv_add_u32 v6, s46, v3\nv_mul_u32_u24 v6, 896, v6")
    a("v_xor_b32 v7, v4, v5\nv_lshl_add_u32 v12, v7, 4, v6")
    a(f"v_xor_b32 v7, 4, v7\nv_lshl_add_u32 v13, v7, 4, v6\nv_add_u32 v13, {8*896-1024}, v13")
    a(f"v_add_u32 v14, {16*896-2048}, v12\nv_add_u32 v15, {16*896-2048}, v13")
    for j in range(3):
        a(f"s_add_u32 s47, s37, {j}\ns_sub_u32 s48, s47, 2\ns_mul_i32 s48, s48, 114688\ns_cmp_ge_u32 s47, 2\n"
          f"s_cselect_b32 s{60+j}, s48, {OOB}")
    a("s_lshl_b32 s49, s40, 12")
    a("s_waitcnt lgkmcnt(0)")
    stamp(a, 2)
    a.srd(16, 4, XB)
    a.srd(20, 6, D * 3 * D * 2)

    if opt("ka_nox", 0):
        a(f"v_mov_b32 v12, {OOB}\nv_mov_b32 v13, {OOB}\nv_mov_b32 v14, {OOB}\nv_mov_b32 v15, {OOB}")
    if opt("ka_now", 0):
        a(f"v_mov_b32 v10, {OOB}")
    if opt("ka_wal", 0):
        a(f"v_and_b32 v10, 0xffffffc0, v10\nv_and_b32 v4, 3, v1\nv_lshl_add_u32 v10, v4, 4, v10")
    def w_op(c, m, tag):
        a(f"s_add_u32 m0, s44, {(c % 3)*12288 + m*4096}\ns_mov_b32 s51, {c*64*2688 + m*896}")
        a("buffer_load_dwordx4 v10, s[20:23], s51 offen lds", tag=tag)
    def unit(u):
        c, j = divmod(u, 3)
        if opt("ka_nodma", 0):
            a.vm.append(("u", u)); return
        a(f"s_add_u32 m0, s49, {(u % 6)*16384}\ns_add_u32 s52, s{60+j}, {c*128}")
        for i in range(4):
            a(f"buffer_load_dwordx4 v{12+i}, s[16:19], s52 offen offset:{1024*i} lds", tag=("u", u))
        w_op(c, (1, 2, 0)[j], ("u", u))
    unit(0)
    a("v_and_b32 v3, 15, v1\nv_lshrrev_b32 v5, 3, v3\nv_xor_b32 v5, 1, v5\nv_lshlrev_b32 v5, 5, v5\n"
      "v_lshl_add_u32 v8, v3, 6, v5\nv_add_u32 v8, s44, v8\nv_mov_b32 v16, 0x3f80\nv_mov_b32 v17, 0")
    for u in range(1, LA - 1):
        unit(u)
    stamp(a, 3)
    nxt = LA - 1
    for u in range(21):
        c, j = divmod(u, 3)
        a.wait(vm=[("u", u)])
        if j == 1:
            a(f"ds_write_b64 v8, v[16:17] offset:{(c % 3)*12288 + 8192 + 24}")
            a("s_waitcnt lgkmcnt(0)")
        a("s_barrier")
        while nxt < 21 and nxt <= u + LA:
            unit(nxt)
            nxt += 1
            if u > 0: break
        if u == 21 - LA and opt("pf", 1):
            a("s_cmp_eq_u32 s40, 0\ns_cselect_b32 s32, s12, s10\ns_cselect_b32 s33, s13, s11")
            a("s_cmp_eq_u32 s40, 1\ns_cselect_b32 s32, s14, s32\ns_cselect_b32 s33, s15, s33")
            a("s_cmp_eq_u32 s40, 2\ns_cselect_b32 s32, s28, s32\ns_cselect_b32 s33, s29, s33")
            a(f"s_mov_b32 s34, {WFB}\ns_cmp_lt_u32 s40, 3\ns_cselect_b32 s34, s34, {D*D*2}\ns_mov_b32 s35, 0x20000")
            a("s_lshl_b32 s56, s63, 1\ns_cmp_lt_u32 s40, 3\ns_cselect_b32 s56, s2, s56\ns_mul_i32 s56, s56, 6272")
            a(f"s_add_u32 s55, s56, 6272\ns_cmp_lt_u32 s40, 3\ns_cselect_b32 s55, {OOB}, s55")
            a(f"v_lshlrev_b32 v5, 7, v1\nv_mov_b32 v6, {OOB}\nv_cmp_gt_u32 vcc, 49, v1\nv_cndmask_b32 v5, v6, v5, vcc")
            a("buffer_load_dword v2, v5, s[32:35], s56 offen", tag="pf")
            a("buffer_load_dword v2, v5, s[32:35], s55 offen", tag="pf")
    stamp(a, 4)
    a("s_barrier\ns_barrier\ns_barrier")
    stamp_flush(a, 0)
    a("s_endpgm")

    a(f"{name}_cons:")
    a.vm, a.lg = [], []
    XBUF, WF = 16, 40
    KACC, VACC, QACC, CSACC, DACC = 96, 120, 144, 152, 156
    ONES = 12
    if opt("ka_touch", 1) == 2:
        assert nh == 16
        a("s_lshl_b32 s53, s57, 8\ns_lshl_b32 s54, s63, 4\ns_add_u32 s53, s53, s54\ns_sub_u32 s53, s53, 256")
        a("v_add_u32 v3, s53, v1\nv_max_i32 v3, 0, v3\nv_mul_u32_u24 v3, 896, v3\ns_min_u32 s55, s36, 6\n"
          "s_lshl_b32 s54, s55, 7\nv_add_u32 v3, s54, v3")
        a("s_mul_i32 s53, s55, 1344\ns_mul_i32 s54, s63, 42\ns_add_u32 s53, s53, s54\nv_subrev_u32 v4, 16, v1\n"
          "v_min_u32 v4, 41, v4\nv_add_u32 v4, s53, v4\nv_lshlrev_b32 v4, 7, v4")
        a("v_cmp_gt_u32 vcc, 16, v1\nv_cndmask_b32 v3, v4, v3, vcc")
        a("s_waitcnt lgkmcnt(0)")
        a("v_mov_b32 v10, s6\nv_mov_b32 v11, s7\nv_mov_b32 v4, s4\nv_cndmask_b32 v10, v10, v4, vcc\n"
          "v_mov_b32 v4, s5\nv_cndmask_b32 v11, v11, v4, vcc")
        a("v_add_co_u32 v10, vcc, v10, v3\nv_addc_co_u32 v11, vcc, 0, v11, vcc")
        a(f"s_cmp_ge_u32 s36, {opt('ka_td', 3)}\ns_cbranch_scc1 {name}_nt0")
        a("global_load_dword v2, v[10:11], off", maybe=True)
        a(f"{name}_nt0:")
    if opt("ka_touch", 1) == 1:
        assert nh == 16
        a("s_mul_i32 s53, s63, 294\ns_mul_i32 s54, s36, 49\ns_add_u32 s53, s53, s54\ns_lshl_b32 s53, s53, 7")
        a("s_lshl_b32 s54, s63, 1\ns_add_u32 s54, s54, s36\ns_sub_u32 s54, s54, 6\ns_mul_i32 s54, s54, 7168")
        a(f"s_mul_i32 s55, s57, 229376\ns_add_u32 s54, s54, s55\ns_cmp_lt_u32 s54, 229376\ns_cselect_b32 s55, {OOB}, 0\n"
          "s_sub_u32 s54, s54, 229376\ns_cmp_eq_u32 s55, 0\ns_cselect_b32 s54, s54, s55")
        a("s_cmp_lt_u32 s36, 6\ns_cselect_b32 s53, s53, s54\ns_cselect_b32 s54, 49, 56")
        a(f"v_lshlrev_b32 v3, 7, v1\nv_mov_b32 v4, {OOB}\nv_cmp_gt_u32 vcc, s54, v1\nv_cndmask_b32 v3, v4, v3, vcc")
        a("s_waitcnt lgkmcnt(0)")
        a("s_cmp_lt_u32 s36, 6\ns_cselect_b32 s16, s6, s4\ns_cselect_b32 s17, s7, s5")
        a(f"s_mov_b32 s18, {D*3*D*2}\ns_cselect_b32 s18, s18, {XB}\ns_mov_b32 s19, 0x20000")
        a("buffer_load_dword v2, v3, s[16:19], s53 offen", tag="touch")
    if opt("cpf", 1):
        a(f"s_getpc_b64 s[32:33]")
        a(f"{name}_pc:")
        a(f"s_sub_u32 s32, s32, {name}_pc-{name}\ns_subb_u32 s33, s33, 0")
        a("s_and_b32 s33, s33, 0xffff")
        a(f"s_mov_b32 s34, code_end-{name}\ns_mov_b32 s35, 0x20000")
        a(f"s_and_b32 s53, s63, 7\ns_lshl_b32 s53, s53, 13\ns_cmp_eq_u32 s36, 7\ns_cselect_b32 s53, s53, {OOB}")
        a("v_lshlrev_b32 v3, 7, v1")
        a("buffer_load_dword v2, v3, s[32:35], s53 offen", tag="cpf")
    a("v_and_b32 v3, 15, v1\nv_lshrrev_b32 v4, 4, v1")
    a("s_lshl_b32 s49, s36, 11\nv_lshlrev_b32 v16, 7, v3\nv_add_u32 v16, s49, v16\nv_lshrrev_b32 v17, 1, v3\n"
      "v_xor_b32 v17, v17, v4")
    a("v_lshl_add_u32 v5, v17, 4, v16\nv_xor_b32 v17, 4, v17\nv_lshl_add_u32 v6, v17, 4, v16")
    a("v_bfe_u32 v16, v1, 2, 2\nv_lshl_add_u32 v16, v4, 3, v16\nv_lshlrev_b32 v16, 6, v16\nv_and_b32 v17, 3, v1\n"
      f"v_lshl_add_u32 v16, v17, 3, v16\nv_add_u32 v16, {WB}, v16\nv_and_b32 v17, 1, v4")
    a("v_lshl_add_u32 v7, v17, 5, v16\nv_xor_b32 v17, 1, v17\nv_lshl_add_u32 v8, v17, 5, v16")
    a("s_sub_u32 s53, s36, 6\ns_cmp_lt_u32 s36, 6\ns_cselect_b32 s53, s36, s53\ns_lshr_b32 s54, s53, 1\n"
      "s_lshl_b32 s54, s54, 12\ns_and_b32 s55, s53, 1\ns_lshl_b32 s55, s55, 5")
    a("v_xor_b32 v9, s55, v7\nv_add_u32 v9, s54, v9")
    for i in range(4):
        a(f"v_mov_b32 v{ONES+i}, {ONES_BF16}")
    for r in list(range(XBUF + 16, XBUF + 24)) + list(range(WF, 168)):
        a(f"v_mov_b32 v{r}, 0")
    a("v_and_b32 v16, 3, v1\nv_cmp_eq_u32 s[90:91], 1, v16\nv_cmp_eq_u32 s[92:93], 2, v16\nv_cmp_eq_u32 s[94:95], 3, v16")
    a("v_lshrrev_b32 v16, 2, v3\nv_cmp_eq_u32 s[30:31], v16, v4")
    a("v_cmp_eq_u32 s[64:65], 12, v3\nv_cmp_lt_u32 s[66:67], 47, v1")
    a("s_waitcnt lgkmcnt(0)")
    a.srd(24, 8, XB, O_OFF)

    xf = lambda j, s: XBUF + 8*j + 4*s
    wf = lambda s, m, t: WF + s*28 + (m*2 + t)*4
    def rd_x(j):
        if opt("ka_nordx", 0):
            return [("s_nop 0", None)]
        return [(f"ds_read_b128 v[{xf(j,s)}:{xf(j,s)+3}], v{5+s} offset:{j*16384}", ("xf", j)) for s in range(2)]
    def rd_w(s, m, t):
        r = wf(s, m, t)
        ad, off = (9, s*2048) if m == 3 else (7 + t, s*2048 + m*4096)
        return [(f"ds_read_b64_tr_b16 v[{r}:{r+1}], v{ad} offset:{off}", ("wf", m)),
                (f"ds_read_b64_tr_b16 v[{r+2}:{r+3}], v{ad} offset:{off + 256}", ("wf", m))]
    def mm(d, A, B):
        if opt("ka_nomm", 0): return "s_nop 0"
        return f"v_mfma_f32_16x16x32_bf16 v[{d}:{d+3}], v[{A}:{A+3}], v[{B}:{B+3}], v[{d}:{d+3}]"
    st2 = [(s, t) for s in range(2) for t in range(2)]
    mmK = lambda j: [mm(KACC + 8*j + 4*t, wf(s, 1, t), xf(j, s)) for s, t in st2]
    mmV = lambda j: [mm(VACC + 8*j + 4*t, xf(j, s), wf(s, 2, t)) for s, t in st2]
    mmQ = lambda: [mm(QACC + 4*t, wf(s, 0, t), xf(2, s)) for s, t in st2]
    mmD = lambda j: [mm(DACC + 4*j, xf(j, s), xf(j, s)) for s in range(2)]
    mmC = lambda: [mm(CSACC, ONES, wf(s, 3, 0)) for s in range(2)]
    def emit(ops):
        for t, tag in ops:
            a(t, tag=tag)
    def phase(mms, reads, waits, extra={}):
        reads = list(reads)
        n = len(mms)
        for i, m in enumerate(mms):
            if i in waits:
                a.wait(lg=[waits[i]])
            a(m)
            left = n - 1 - i - opt("ka_tail", 2)
            k = 1 if len(reads) <= max(left, 0) + 1 else 2
            for _ in range(k):
                if reads and reads[0][0] <= i:
                    _, t, tag = reads.pop(0)
                    a(t, tag=tag)
            if i in extra:
                a(extra[i])
        assert not reads, reads
    def rl(m, first=0, step=1):
        out = []
        for i, (s, t) in enumerate(st2):
            out += [(first + step*i, x, y) for x, y in rd_w(s, m, t)]
        return out
    stamp(a, 3)
    a("s_barrier")
    stamp(a, 4)
    emit(rd_x(0))
    emit([(x, y) for _, x, y in rl(1)])
    a(f"s_mov_b32 s58, 49152\ns_mov_b32 s59, 0\ns_mov_b32 s47, 0\ns_movk_i32 s45, 12288")
    a(f"{name}_loop:")
    if opt("ka_touch", 1) == 2:
        a(f"s_add_u32 s48, s47, {opt('ka_td', 3)}\ns_cmp_lg_u32 s48, s36\ns_cbranch_scc1 {name}_nt")
        a("global_load_dword v2, v[10:11], off", maybe=True)
        a(f"{name}_nt:")
    X = lambda j: [(0, x, y) for x, y in rd_x(j)]
    a.wait(lg=[("xf", 0)])
    a("s_barrier")
    phase(mmV(2) + mmQ() + mmK(0), X(1) + rl(2), {8: ("wf", 1)})
    a.wait(lg=[("xf", 1)])
    a("s_barrier")
    csr = [(0, x, y) for x, y in rd_w(0, 3, 0)] + [(1, x, y) for x, y in rd_w(1, 3, 0)]
    phase(mmC() + mmK(1) + mmD(0) + mmV(0), X(2) + csr + rl(0, 0, 0), {8: ("wf", 2)},
          {10: f"s_add_u32 s59, s59, 1\ns_cmp_eq_u32 s59, 3\ns_cselect_b32 s59, 0, s59\n"
               f"s_cselect_b32 s48, {(-2*12288) & 0xffffffff}, s45\n"
               "v_add_u32 v5, s58, v5\nv_add_u32 v6, s58, v6\ns_sub_u32 s58, 0, s58",
           11: "v_add_u32 v7, s48, v7\nv_add_u32 v8, s48, v8\nv_add_u32 v9, s48, v9"})
    a.wait(lg=[("xf", 2)])
    a("s_barrier")
    d2, d1 = mmD(2), mmD(1)
    phase(mmK(2) + [d2[0], d1[0], d2[1], d1[1]] + mmV(1), X(0) + rl(1), {})
    a(f"s_add_u32 s47, s47, 1\ns_cmp_lt_u32 s47, {NCH}\ns_cbranch_scc1 {name}_loop")
    a.wait(lg=[("wf", 0)])
    for m in mmV(2) + mmC() + mmQ():
        a(m)
    stamp(a, 6)
    ST = 88
    a(f"s_lshl_b32 s58, s36, 10\ns_add_u32 s58, s58, {MISC+512}\nv_lshlrev_b32 v5, 2, v3\nv_add_u32 v6, s58, v5\n"
      "v_lshlrev_b32 v7, 4, v4\nv_add_u32 v8, s58, v7")
    a(f"s_lshl_b32 s57, s53, 6\ns_add_u32 s57, s57, {MISC}\nv_add_u32 v9, s57, v5")
    a(f"ds_write_b32 v9, v{CSACC}")
    a("s_mov_b64 exec, s[64:65]")
    for j in range(3):
        a(f"ds_write_b128 v8, v[{VACC+8*j+4}:{VACC+8*j+7}] offset:{128*j}")
    a("s_mov_b64 exec, -1")
    for j in range(3):
        d = DACC + 4*j
        a(f"v_cndmask_b32 v{d}, v{d}, v{d+1}, s[90:91]\nv_cndmask_b32 v{d}, v{d}, v{d+2}, s[92:93]\n"
          f"v_cndmask_b32 v{d}, v{d}, v{d+3}, s[94:95]")
    a("s_mov_b64 exec, s[30:31]")
    for j in range(3):
        a(f"ds_write_b32 v6, v{DACC+4*j} offset:{128*j+64}")
    a("s_mov_b64 exec, -1")
    a("s_waitcnt lgkmcnt(0)")
    for i in range(6):
        a(f"ds_read_b32 v{ST+i}, v6 offset:{64*i}")
    a("s_barrier")
    a(f"v_add_u32 v7, {MISC}, v7\nv_add_u32 v5, {MISC}, v5")
    for i in range(4):
        a(f"ds_read_b128 v[{44+4*i}:{47+4*i}], v7 offset:{64*i}")
    a("ds_read_b32 v60, v5 offset:256\nds_read_b32 v61, v5 offset:320")
    a("v_lshlrev_b32 v9, 4, v1\nv_add_u32 v9, s49, v9\nv_lshlrev_b32 v10, 3, v1\nv_add_u32 v10, s49, v10")
    a("s_waitcnt lgkmcnt(6)")
    for j in range(3):
        sm, sq = ST + 2*j, ST + 2*j + 1
        a(f"v_mul_f32 v{sm}, {fx(-1.0/D)}, v{sm}\nv_mul_f32 v{sq}, {fx(1.0/D)}, v{sq}")
    for j in range(3):
        sm, sq = ST + 2*j, ST + 2*j + 1
        a(f"v_fma_f32 v{sq}, -v{sm}, v{sm}, v{sq}\nv_max_f32 v{sq}, 0, v{sq}\nv_add_f32 v{sq}, {fx(1e-5)}, v{sq}")
    for j in range(3):
        a(f"v_rsq_f32 v{ST+2*j+1}, v{ST+2*j+1}")
    for j in range(3):
        a(f"v_mul_f32 v{ST+2*j}, v{ST+2*j}, v{ST+2*j+1}")
    for i in range(6):
        a(f"ds_write_b32 v6, v{ST+i} offset:{512+64*i}")
    a("s_waitcnt lgkmcnt(0)")
    for i in range(6):
        a(f"ds_read_b128 v[{16+4*i}:{19+4*i}], v8 offset:{512+64*i}", tag="sv")
    NEGB = f32bits(-1e30) >> 16
    for j in range(3):
        b, aa = ST + 2*j, ST + 2*j + 1
        for i in range(8):
            a(f"v_mul_f32 v{64+i}, v{b}, v{52+i}")
        for i in range(8):
            a(f"v_fma_f32 v{KACC+8*j+i}, v{KACC+8*j+i}, v{aa}, v{64+i}")
        for i in range(4):
            a(f"v_cvt_pk_bf16_f32 v{72+4*j+i}, v{KACC+8*j+2*i}, v{KACC+8*j+2*i+1}")
        if j < 2:
            a(f"s_add_u32 s47, s37, {j}\ns_cmp_ge_u32 s47, 2\ns_cselect_b32 s47, 0, {NEGB}\nv_mov_b32 v62, s47")
            a(f"v_cndmask_b32 v{74+4*j}, v{74+4*j}, v62, s[66:67]")
        else:
            a(f"v_cndmask_b32 v{74+4*j}, v{74+4*j}, 0, s[66:67]")
        a(f"v_cndmask_b32 v{75+4*j}, v{75+4*j}, 0, s[66:67]")
        a(f"ds_write_b128 v9, v[{72+4*j}:{75+4*j}] offset:{j*16384}")
    a.wait(lg="sv")
    for j in range(3):
        for t in range(2):
            for r in range(4):
                a(f"v_mul_f32 v{64+4*t+r}, v{16+8*j+r}, v{60+t}")
        for t in range(2):
            for r in range(4):
                a(f"v_fma_f32 v{VACC+8*j+4*t+r}, v{VACC+8*j+4*t+r}, v{20+8*j+r}, v{64+4*t+r}")
        P = KACC + 4*j
        for i in range(4):
            a(f"v_cvt_pk_bf16_f32 v{P+i}, v{VACC+8*j+2*i}, v{VACC+8*j+2*i+1}")
        a(f"v_cndmask_b32 v{P+2}, v{P+2}, v{ONES}, s[64:65]\nv_cndmask_b32 v{P+3}, v{P+3}, v{ONES}, s[64:65]")
        a(f"ds_write_b64 v10, v[{P}:{P+1}] offset:{j*16384+1024}\n"
          f"ds_write_b64 v10, v[{P+2}:{P+3}] offset:{j*16384+1536}")
    QF, BIA = 12, 156
    csc = DH ** -0.5 * math.log2(math.e)
    a(f"v_mul_f32 v62, {fx(csc)}, v{ST+4}\nv_mul_f32 v63, {fx(csc)}, v{ST+5}")
    for i in range(8):
        a(f"v_mul_f32 v{64+i}, v62, v{44+i}")
    for i in range(8):
        a(f"v_fma_f32 v{QACC+i}, v{QACC+i}, v63, v{64+i}")
    for i in range(4):
        a(f"v_cvt_pk_bf16_f32 v{QF+i}, v{QACC+2*i}, v{QACC+2*i+1}")
    a(f"v_mov_b32 v62, 0x3f80\nv_cndmask_b32 v{QF+2}, v{QF+2}, v62, s[66:67]\nv_cndmask_b32 v{QF+3}, v{QF+3}, 0, s[66:67]")
    a(f"v_mov_b32 v62, {NEG}\nv_lshlrev_b32 v63, 2, v4")
    for r in range(4):
        a(f"v_add_u32 v64, {r}, v63\nv_cmp_gt_u32 vcc, v64, v3\nv_cndmask_b32 v{BIA+r}, v62, 0, vcc\n"
          f"v_cndmask_b32 v{BIA+4+r}, 0, v62, vcc")
    a("s_waitcnt lgkmcnt(0)")
    a("s_barrier")
    stamp(a, 7)
    KF, SS, VF, PP, OA, NM, M = 16, 84, 108, 140, 148, 164, 5
    for j in range(17):
        a(f"ds_read_b128 v[{KF+4*j}:{KF+4*j+3}], v9 offset:{j*2048}", tag=("kf", j))
    def rd_v(p):
        for j in ([2*p, 2*p+1] if p < 8 else [16]):
            for t in range(2):
                r = VF + (p % 4)*8 + t*4 + (j & 1)*2
                a(f"ds_read_b64 v[{r}:{r+1}], v10 offset:{j*2048 + 1024 + t*512}", tag=("vf", p))
    sreg = lambda j: SS + 4*(j % 6)
    a("s_lshl_b32 s47, s37, 7\ns_lshl_b32 s46, s36, 4\ns_add_u32 s47, s47, s46\nv_add_u32 v7, s47, v3\n"
      "v_mul_u32_u24 v7, 896, v7\nv_lshl_add_u32 v7, v4, 3, v7")
    def mx(j):
        r = sreg(j)
        if j == 0:
            a(f"v_max3_f32 v{M}, v{r}, v{r+1}, v{r+2}\nv_mov_b32 v{M+1}, v{r+3}")
        else:
            a(f"v_max3_f32 v{M}, v{M}, v{r}, v{r+1}\nv_max3_f32 v{M+1}, v{M+1}, v{r+2}, v{r+3}")
    LAG = 4
    for j in range(17 + LAG):
        if j < 17:
            a.wait(lg=[("kf", j)])
            cc = f"v[{BIA}:{BIA+3}]" if j == 0 else (f"v[{BIA+4}:{BIA+7}]" if j == 16 else "0")
            a(f"v_mfma_f32_16x16x32_bf16 v[{sreg(j)}:{sreg(j)+3}], v[{KF+4*j}:{KF+4*j+3}], v[{QF}:{QF+3}], {cc}")
        if j >= LAG:
            mx(j - LAG)
        if j == 16:
            for p in range(3):
                rd_v(p)
    stamp(a, 8)
    a(f"v_max_f32 v{M}, v{M}, v{M+1}\nv_mov_b32 v{M+1}, v{M}\nv_permlane16_swap_b32 v{M}, v{M+1}\n"
      f"v_max_f32 v{M}, v{M}, v{M+1}\nv_mov_b32 v{M+1}, v{M}\nv_permlane32_swap_b32 v{M}, v{M+1}\n"
      f"v_max_f32 v{M}, v{M}, v{M+1}")
    for r in range(4):
        a(f"v_sub_f32 v{BIA+r}, v{BIA+r}, v{M}")
    for r in range(4):
        a(f"v_sub_f32 v{NM+r}, 0, v{M}")
    for r in range(4):
        a(f"v_sub_f32 v{BIA+4+r}, v{BIA+4+r}, v{M}")
    def smm(p):
        for j in ([2*p, 2*p+1] if p < 8 else [16]):
            cc = BIA if j == 0 else (BIA + 4 if j == 16 else NM)
            a(f"v_mfma_f32_16x16x32_bf16 v[{sreg(j)}:{sreg(j)+3}], v[{KF+4*j}:{KF+4*j+3}], v[{QF}:{QF+3}], v[{cc}:{cc+3}]")
    smm(0)
    smm(1)
    for p in range(9):
        tiles = [2*p, 2*p+1] if p < 8 else [16]
        if p + 2 < 9:
            smm(p + 2)
        for j in tiles:
            for r in range(4):
                a(f"v_exp_f32 v{sreg(j)+r}, v{sreg(j)+r}")
        pr = PP + 4*(p & 1)
        for i, j in enumerate(tiles):
            a(f"v_cvt_pk_bf16_f32 v{pr+2*i}, v{sreg(j)}, v{sreg(j)+1}\nv_cvt_pk_bf16_f32 v{pr+2*i+1}, v{sreg(j)+2}, v{sreg(j)+3}")
        a.wait(lg=[("vf", p)])
        for t in range(2):
            r = VF + (p % 4)*8 + t*4
            cc = "0" if p == 0 else f"v[{OA+4*t}:{OA+4*t+3}]"
            if p < 8:
                a(f"v_mfma_f32_16x16x32_bf16 v[{OA+4*t}:{OA+4*t+3}], v[{r}:{r+3}], v[{pr}:{pr+3}], {cc}")
            else:
                a(f"v_mfma_f32_16x16x16_bf16 v[{OA+4*t}:{OA+4*t+3}], v[{r}:{r+1}], v[{pr}:{pr+1}], {cc}")
        if p + 3 < 9:
            rd_v(p + 3)
    a(f"v_mov_b32 v{M}, v{OA+4}\nv_mov_b32 v{M+1}, v{OA+4}\nv_permlane32_swap_b32 v{M}, v{M+1}\n"
      f"v_mov_b32 v{M}, v{M+1}\nv_permlane16_swap_b32 v{M}, v{M+1}\nv_rcp_f32 v{M+1}, v{M+1}")
    for i in range(8):
        a(f"v_mul_f32 v{OA+i}, v{OA+i}, v{M+1}")
    for i in range(4):
        a(f"v_cvt_pk_bf16_f32 v{20+i}, v{OA+2*i}, v{OA+2*i+1}")
    a("buffer_store_dwordx2 v[20:21], v7, s[24:27], s42 offen")
    a("s_andn2_b64 exec, exec, s[66:67]")
    a("buffer_store_dwordx2 v[22:23], v7, s[24:27], s42 offen offset:32")
    stamp(a, 9)
    stamp_flush(a, 0)
    a(f"{name}_end:")
    a("s_endpgm")
    return a.lines, 168, LDS, 768
```

```python
from common import *

def kc_kernel(name):
    a = Asm()
    NT, NCH, NS = 7, 7, 3
    SLOT = 49152
    CSL = NS * SLOT
    ACC = 128
    WF = 32
    HF = 60
    nf = opt("kc_nf", 8)
    groups, nr = 16 // nf, 32 // nf
    lg = lambda x: x.bit_length() - 1
    stamp_begin(a)
    a("s_load_dwordx2 s[4:5], s[0:1], %d" % KA_WS)
    a("s_load_dwordx4 s[12:15], s[0:1], %d" % KA_WG)
    a("s_load_dwordx2 s[6:7], s[0:1], %d" % KA_WD)
    lane_wave(a)
    a("s_cmp_ge_u32 s2, 256")
    a(f"s_cbranch_scc1 {name}_end")
    a("s_and_b32 s57, s2, 7\ns_lshr_b32 s58, s2, 3")
    a(f"s_lshr_b32 s37, s57, {lg(groups)}\ns_lshl_b32 s37, s37, {lg(nr)}\ns_lshr_b32 s39, s58, {lg(nf)}\n"
      "s_add_u32 s37, s37, s39")
    a(f"s_and_b32 s38, s57, {groups-1}\ns_lshl_b32 s38, s38, {lg(nf)}\ns_and_b32 s60, s58, {nf-1}\n"
      "s_add_u32 s38, s38, s60")
    a("s_and_b32 s59, s36, 3")
    a("s_lshl_b32 s40, s37, 7\ns_lshl_b32 s41, s59, 5\ns_add_u32 s40, s40, s41")
    a("s_mul_i32 s45, s38, 224\ns_lshl_b32 s47, s59, 12")
    a("s_cmp_lt_u32 s36, 4")
    a(f"s_cbranch_scc1 {name}_cons")
    if opt("prio", 0):
        a("s_setprio 3")
    a("v_lshrrev_b32 v3, 3, v1\nv_and_b32 v4, 7, v1\nv_lshrrev_b32 v5, 1, v3")
    a("v_add_u32 v6, s40, v3\nv_mul_u32_u24 v6, 896, v6")
    a("v_xor_b32 v7, v4, v5\nv_lshl_add_u32 v10, v7, 4, v6")
    a(f"v_xor_b32 v7, 4, v7\nv_lshl_add_u32 v11, v7, 4, v6\nv_add_u32 v11, {8*896-1024}, v11")
    a(f"v_add_u32 v12, {16*896-2048}, v10\nv_add_u32 v13, {16*896-2048}, v11")
    a("s_lshr_b32 s42, s59, 1\ns_and_b32 s43, s59, 1")
    a("v_lshrrev_b32 v3, 4, v1\ns_lshl_b32 s44, s42, 2\nv_or_b32 v4, s44, v3\nv_bfe_u32 v5, v1, 1, 3\n"
      "v_xor_b32 v4, v4, v5")
    a(f"s_lshl_b32 s44, s43, 2\nv_add_u32 v3, s44, v3\nv_mul_u32_u24 v14, {DF*2}, v3")
    a("v_lshl_add_u32 v14, v4, 5, v14\nv_and_b32 v5, 1, v1\nv_lshl_add_u32 v14, v5, 4, v14")
    a("v_add_u32 v14, s45, v14")
    a(f"v_cmp_eq_u32 vcc, 7, v4\nv_mov_b32 v5, {OOB}\nv_cndmask_b32 v14, v14, v5, vcc")
    a(f"v_add_u32 v15, {8*DF*2 - 2048}, v14")
    a("s_lshl_b32 s48, s42, 14\ns_lshl_b32 s49, s43, 10\ns_add_u32 s48, s48, s49\ns_add_u32 s48, s48, 16384")
    if opt("kc_rot", 0):
        a("s_lshl_b32 s44, s39, 1\ns_add_u32 s44, s44, s60")
        a("s_mul_i32 s46, s44, 37\ns_lshr_b32 s46, s46, 8\ns_mul_i32 s46, s46, 7\ns_sub_u32 s44, s44, s46")
    else:
        a("s_mov_b32 s44, 0")
    a(f"s_lshl_b32 s52, s44, 7\ns_mul_i32 s53, s44, {64*DF*2}")
    a("s_waitcnt lgkmcnt(0)")
    stamp(a, 2)
    a.srd(16, 4, XB, H_OFF)
    a("s_cmp_eq_u32 s42, 0\ns_cselect_b32 s20, s12, s14\ns_cselect_b32 s21, s13, s15")
    a(f"s_mov_b32 s22, {WFB}\ns_mov_b32 s23, 0x20000")

    def dma(c):
        slot = c % NS
        a(f"s_add_u32 m0, s47, {slot*SLOT}")
        for i in range(4):
            a(f"buffer_load_dwordx4 v{10+i}, s[16:19], s52 offen offset:{1024*i} lds")
        for i in range(4):
            a(f"s_add_u32 m0, s48, {slot*SLOT + i*4096}")
            a("buffer_load_dwordx4 v14, s[20:23], s53 offen lds")
            a("buffer_load_dwordx4 v15, s[20:23], s53 offen offset:2048 lds")
            a(f"s_add_u32 s53, s53, {16*DF*2}")
        a(f"s_add_u32 s52, s52, 128\ns_cmp_eq_u32 s52, {NCH*128}\ns_cselect_b32 s52, 0, s52\ns_cselect_b32 s53, 0, s53")
    dma(0)
    dma(1)
    stamp(a, 3)
    a("s_waitcnt vmcnt(12)\ns_barrier")
    dma(2)
    for c in range(1, NCH):
        if c + 1 < NCH:
            a("s_waitcnt vmcnt(12)\ns_barrier")
        else:
            a("s_waitcnt vmcnt(0)\ns_barrier")
        if c + 2 < NCH:
            dma(c + 2)
    stamp(a, 4)
    if opt("kc_pf", 0):
        a.srd(24, 6, WFB)
        a("s_mul_i32 s60, s58, 50176\ns_mul_i32 s61, s59, 12544\ns_add_u32 s60, s60, s61\nv_lshlrev_b32 v3, 7, v1")
        a("buffer_load_dword v20, v3, s[24:27], s60 offen")
        a("s_add_u32 s60, s60, 8192\nv_cmp_gt_u32 vcc, 34, v1\ns_and_b64 exec, exec, vcc")
        a("buffer_load_dword v21, v3, s[24:27], s60 offen")
    stamp_flush(a, 2)
    a("s_endpgm")
    a(f"{name}_cons:")
    a(f"s_mul_i32 s46, s38, 448\nv_lshlrev_b32 v15, 4, v1\nv_add_u32 v15, s46, v15\nv_mov_b32 v5, {OOB}")
    a(f"v_add_u32 v6, {DF*4 - 448}, v15\nv_cmp_lt_u32 vcc, 27, v1\nv_cndmask_b32 v15, v15, v6, vcc")
    a("v_cmp_lt_u32 vcc, 55, v1\nv_cndmask_b32 v15, v15, v5, vcc")
    a(f"v_and_b32 v3, 31, v1\nv_lshrrev_b32 v4, 5, v1\nv_add_u32 v16, s40, v3\nv_lshlrev_b32 v16, 3, v16\n"
      f"v_lshl_add_u32 v16, v4, 14, v16")
    a(f"s_lshl_b32 s50, s36, 10\ns_add_u32 m0, s50, {CSL}")
    a("s_waitcnt lgkmcnt(0)")
    stamp(a, 2)
    a.srd(24, 4, CSB, CS_OFF)
    a.srd(28, 4, STB, ST_OFF)
    a("buffer_load_dwordx4 v15, s[24:27], 0 offen lds", tag="cs")
    for p in range(7):
        a(f"s_mov_b32 s51, {p*2*S*8}")
        a(f"buffer_load_dwordx2 v[{70+2*p}:{71+2*p}], v16, s[28:31], s51 offen", tag="st")
    a.srd(32, 4, HHB, HH_OFF)
    a("v_lshlrev_b32 v5, 7, v3\nv_add_u32 v5, s47, v5")
    a("v_lshrrev_b32 v6, 1, v3\nv_and_b32 v6, 7, v6\nv_xor_b32 v6, v6, v4")
    for s in range(4):
        a(f"v_xor_b32 v7, {2*s}, v6\nv_lshl_add_u32 v{20+s}, v7, 4, v5")
    a("v_bfe_u32 v5, v1, 2, 2\nv_bfe_u32 v6, v1, 4, 1\nv_lshl_add_u32 v7, v4, 3, v5\nv_lshlrev_b32 v7, 8, v7")
    a("v_lshl_add_u32 v7, v6, 14, v7\nv_and_b32 v8, 3, v1\nv_lshl_add_u32 v7, v8, 3, v7\nv_add_u32 v7, 16384, v7")
    a("v_lshl_add_u32 v5, v6, 2, v5")
    for t in range(NT):
        a(f"v_xor_b32 v8, {t}, v5\nv_lshl_add_u32 v{24+t}, v8, 5, v7")
    ES = ((NCH - 2) % NS) * SLOT + 16384
    a(f"s_lshl_b32 s55, s36, 13\ns_add_u32 s55, s55, {ES}")
    a(f"s_mul_i32 s56, s40, {DF*2}\ns_add_u32 s56, s56, s45")
    filler = "v_mul_u32_u24 v17, 240, v3\nv_lshl_add_u32 v17, v4, 3, v17\nv_add_u32 v17, s55, v17".split("\n")
    for i in range(7):
        filler += (f"v_add_u32 v6, {64*i}, v1\nv_mul_u32_u24 v7, 4682, v6\nv_lshrrev_b32 v7, 16, v7\n"
          f"v_mul_u32_u24 v8, 14, v7\nv_sub_u32 v8, v6, v8\nv_lshlrev_b32 v8, 4, v8\n"
          f"v_mul_u32_u24 v9, 240, v7\nv_add3_u32 v{86+i}, v9, v8, s55\n"
          f"v_mul_u32_u24 v9, {DF*2}, v7\nv_add_u32 v{94+i}, v9, v8").split("\n")
    k0 = -2.0 * math.sqrt(2.0 / math.pi) * math.log2(math.e)
    filler += ["v_rsq_f32 v75, v74", "v_nop", f"v_mul_f32 v76, {fx(k0)}, v75", "v_mul_f32 v77, v75, v75", "v_mul_f32 v77, v77, v76",
               f"v_mul_f32 v78, {fx(0.044715)}, v77", "v_mov_b32 v75, v74", "v_mov_b32 v77, v76", "v_mov_b32 v79, v78"]
    a(f"v_lshlrev_b32 v5, 4, v4\nv_add_u32 v5, s50, v5\nv_add_u32 v5, {CSL}, v5")
    stamp(a, 3)
    a.wait(vm="cs")
    def rd_cs(t):
        for q in range(4):
            off = (q >> 1) * 448 + t * 64 + (q & 1) * 32
            a(f"ds_read_b128 v[{ACC+16*t+4*q}:{ACC+16*t+4*q+3}], v5 offset:{off}", tag=("ci", t))
    for t in range(NT):
        rd_cs(t)
    a.wait(vm="st")
    stamp(a, 4)
    for p in range(1, 7):
        a(f"v_add_f32 v70, v70, v{70+2*p}\nv_add_f32 v71, v71, v{71+2*p}")
    a("v_mov_b32 v72, v70\nv_mov_b32 v73, v71")
    a("v_permlane32_swap_b32 v70, v72\nv_permlane32_swap_b32 v71, v73")
    a("v_add_f32 v70, v70, v72\nv_add_f32 v71, v71, v73")
    a(f"v_mul_f32 v70, {fx(-1.0/D)}, v70")
    a(f"v_mul_f32 v71, {fx(1.0/D)}, v71")
    a("v_fma_f32 v71, -v70, v70, v71")
    a(f"v_max_f32 v71, 0, v71\nv_add_f32 v74, {fx(1e-5)}, v71")
    a("v_mov_b32 v71, v70")
    a("s_waitcnt lgkmcnt(0)")
    for t in range(NT):
        for j in range(8):
            r = ACC + 16*t + 2*j
            a(f"v_pk_mul_f32 v[{r}:{r+1}], v[{r}:{r+1}], v[70:71]")

    def rd_w(c, s, t):
        o = s * 4096
        a(f"ds_read_b64_tr_b16 v[{WF+4*t}:{WF+4*t+1}], v{24+t} offset:{o}", tag=("w", c, s, t))
        a(f"ds_read_b64_tr_b16 v[{WF+4*t+2}:{WF+4*t+3}], v{24+t} offset:{o+1024}", tag=("w", c, s, t))
    def rd_h(c, s):
        b = HF + 4 * (s & 1)
        a(f"ds_read_b128 v[{b}:{b+3}], v{20+s}", tag=("h", c, s))
    def adv_addr(c, regs):
        d = SLOT if c % NS else -(NS-1)*SLOT
        for r in regs:
            a(f"v_add_u32 v{r}, {d & 0xffffffff}, v{r}")
    stamp(a, 5)
    a("s_barrier")
    stamp(a, 6)
    rd_h(0, 0)
    for t in range(NT - 1):
        rd_w(0, 0, t)
    for c in range(NCH):
        for s in range(4):
            for t in range(NT):
                a.wait(lg=[("w", c, s, t), ("h", c, s)])
                b = HF + 4 * (s & 1)
                a(f"v_mfma_f32_32x32x16_bf16 v[{ACC+16*t}:{ACC+16*t+15}], v[{WF+4*t}:{WF+4*t+3}], v[{b}:{b+3}], "
                  f"v[{ACC+16*t}:{ACC+16*t+15}]")
                last = (s == 3)
                if filler and not last:
                    a(filler.pop(0))
                if t == 0:
                    rd_w(c, s, NT - 1)
                    if not last:
                        rd_h(c, s + 1)
                    elif c + 1 < NCH:
                        adv_addr(c + 1, [20, 21, 22, 23])
                elif not last:
                    rd_w(c, s + 1, t - 1)
                elif c + 1 < NCH:
                    if t == 1:
                        adv_addr(c + 1, [24, 25, 26, 27])
                    if t == 2:
                        adv_addr(c + 1, [28, 29, 30])
                        a("s_waitcnt lgkmcnt(0)")
                        a("s_barrier")
                        if c == 2: stamp(a, 7)
                        rd_h(c + 1, 0)
                        rd_w(c + 1, 0, 0)
                        rd_w(c + 1, 0, 1)
                    elif t > 2:
                        rd_w(c + 1, 0, t - 1)
    assert not filler
    stamp(a, 8)
    for t in range(NT):
        g0, u0 = ACC + 16*t, ACC + 16*t + 8
        T = 32
        for j in range(4):
            a(f"v_pk_mul_f32 v[{T+2*j}:{T+2*j+1}], v[{g0+2*j}:{g0+2*j+1}], v[{g0+2*j}:{g0+2*j+1}]")
        for j in range(4):
            a(f"v_pk_fma_f32 v[{T+2*j}:{T+2*j+1}], v[{T+2*j}:{T+2*j+1}], v[78:79], v[76:77]")
        for j in range(4):
            a(f"v_pk_mul_f32 v[{T+2*j}:{T+2*j+1}], v[{T+2*j}:{T+2*j+1}], v[{g0+2*j}:{g0+2*j+1}]")
        for j in range(8):
            a(f"v_exp_f32 v{T+j}, v{T+j}")
        for j in range(4):
            a(f"v_pk_mul_f32 v[{g0+2*j}:{g0+2*j+1}], v[{g0+2*j}:{g0+2*j+1}], v[{u0+2*j}:{u0+2*j+1}]")
        for j in range(4):
            a(f"v_pk_fma_f32 v[{T+2*j}:{T+2*j+1}], v[{T+2*j}:{T+2*j+1}], v[74:75], v[74:75]")
        for j in range(8):
            a(f"v_rcp_f32 v{T+j}, v{T+j}")
        for j in range(4):
            a(f"v_pk_mul_f32 v[{g0+2*j}:{g0+2*j+1}], v[{g0+2*j}:{g0+2*j+1}], v[{T+2*j}:{T+2*j+1}]")
        for j in range(4):
            a(f"v_cvt_pk_bf16_f32 v{u0+j}, v{g0+2*j}, v{g0+2*j+1}")
        a(f"ds_write_b64 v17, v[{u0}:{u0+1}] offset:{32*t}", tag="ew")
        a(f"ds_write_b64 v17, v[{u0+2}:{u0+3}] offset:{32*t+16}", tag="ew")
    a.wait(lg="ew")
    for i in range(7):
        a(f"ds_read_b128 v[{32+4*i}:{35+4*i}], v{86+i}", tag=("er", i))
    for i in range(7):
        a.wait(lg=[("er", i)])
        a(f"buffer_store_dwordx4 v[{32+4*i}:{35+4*i}], v{94+i}, s[32:35], s56 offen" + ["", " sc1", " sc0 sc1"][opt("kc_st", 0)])
    stamp(a, 9)
    stamp_flush(a, 2)
    a(f"{name}_end:")
    a("s_endpgm")
    return a.lines, 240, NS * SLOT + 4096
```

```python
from common import *
from k_gemm64 import gemm64
from k_kc import kc_kernel
from k_ka import ka_kernel


def build(kernels, path):
    ref = open("sequential_preLN__sliding_block__glu_gated_geglu__prompt.s.ref").read()
    head = [l for l in ref.split("\n") if l.startswith(";") and "@launch" not in l and "Override" not in l
            and "grid=ceil" not in l]
    out = list(head)
    for label, _, _, grid, block, lds in kernels:
        out.append(f"; @launch kernel={label} grid=({grid},1,1) block=({block},1,1) lds={lds}")
    out.append('.amdgcn_target "amdgcn-amd-amdhsa--gfx950"')
    out.append(".text")
    for label, lines, vg, *_ in kernels:
        out += kernel_head(label)
        out += hazard_pass_fast(lines)
    out.append("code_end:")
    out.append("    s_endpgm")
    out.append('.section .rodata,"a"')
    for label, lines, vg, *_ in kernels:
        out += kernel_desc(label, vg)
    open(path, "w").write("\n".join(out) + "\n")


if __name__ == "__main__":
    args = sys.argv[1:]
    if "--stamp" in args:
        Cfg.stamp = True
        args.remove("--stamp")
    for x in list(args):
        if "=" in x:
            k, v = x.split("=")
            Cfg.opts[k] = int(v)
            args.remove(x)
    ka, kav, kal, kab = ka_kernel("ka_kernel")
    kb, kbv, kbl = gemm64("kb_kernel", True)
    kd, kdv, kdl = gemm64("kd_kernel", False)
    kc, kcv, kcl = kc_kernel("kc_kernel")
    out = args[0] if args else "t_all.s"
    build([("ka_kernel", ka, kav, 256, kab, kal), ("kb_kernel", kb, kbv, 256, 512, kbl),
           ("kc_kernel", kc, kcv, 256, 512, kcl), ("kd_kernel", kd, kdv, 224, 512, kdl)], out)
```

```python
import re

_REG = re.compile(r"^(-|abs\(|\|)?([vas])(?:(\d+)|\[(\d+):(\d+)\])\)?\|?$")


def regs_of(tok):
    tok = tok.strip()
    m = _REG.match(tok)
    if m:
        f = m.group(2)
        if m.group(3) is not None:
            return {f + m.group(3)}
        return {f + str(i) for i in range(int(m.group(4)), int(m.group(5)) + 1)}
    if tok in ("vcc", "vcc_lo", "vcc_hi"):
        return {"vcc"}
    if tok in ("exec", "exec_lo", "exec_hi"):
        return {"exec"}
    if tok == "m0":
        return {"m0"}
    return set()


TRANS = ("v_exp_f32", "v_log_f32", "v_rcp_f32", "v_rsq_f32", "v_sqrt_f32", "v_sin_f32", "v_cos_f32",
         "v_rcp_iflag_f32")


class Ins:
    def __init__(self, text):
        self.text = text
        t = text.split(";")[0].strip()
        self.label = None
        self.mn = ""
        self.ops = []
        self.mods = ""
        if t.endswith(":"):
            self.label = t[:-1]
            return
        if not t or t.startswith("."):
            return
        parts = t.split(None, 1)
        self.mn = parts[0]
        rest = parts[1] if len(parts) > 1 else ""
        ops, cur, depth = [], "", 0
        for ch in rest:
            if ch in "[(":
                depth += 1
            if ch in "])":
                depth -= 1
            if ch == "," and depth == 0:
                ops.append(cur.strip())
                cur = ""
            else:
                cur += ch
        if cur.strip():
            ops.append(cur.strip())
        if ops:
            sp = ops[-1].split(None, 1)
            ops[-1] = sp[0]
            self.mods = sp[1] if len(sp) > 1 else ""
        self.ops = ops
        self.classify()

    def classify(self):
        mn, ops = self.mn, self.ops
        base = re.sub(r"_(e32|e64|dpp|sdwa)$", "", mn)
        self.base = base
        self.is_mfma = base.startswith("v_mfma")
        self.is_valu = base.startswith("v_") and not self.is_mfma
        self.is_salu = base.startswith("s_") and not base.startswith(("s_load", "s_waitcnt", "s_nop", "s_barrier",
                                                                      "s_branch", "s_cbranch", "s_endpgm",
                                                                      "s_memtime", "s_memrealtime", "s_setprio",
                                                                      "s_sleep", "s_buffer_load"))
        self.is_vmem = base.startswith(("buffer_", "global_", "flat_"))
        self.is_ds = base.startswith("ds_")
        self.is_dpp = "quad_perm" in self.mods or "row_" in self.mods or mn.endswith("_dpp")
        self.is_trans = base in TRANS
        self.is_dot = base.startswith("v_dot")
        self.is_perml = base.startswith("v_permlane")
        self.is_lds_dma = self.is_vmem and (" lds" in " " + self.mods or "load_lds" in base)
        w, r = set(), set()
        R = [regs_of(o) for o in ops]
        if self.is_mfma:
            w |= R[0]
            self.A, self.B, self.C = R[1], R[2], R[3]
            r |= R[1] | R[2] | R[3]
            self.passes = 8 if "32x32" in base else (2 if "4x4x4" in base else 4)
            self.D = R[0]
        elif self.is_valu:
            if base.startswith("v_cmp"):
                w |= R[0]
                for x in R[1:]:
                    r |= x
                if base.startswith("v_cmpx"):
                    w |= {"exec"}
            elif self.is_perml:
                w |= R[0] | R[1]
                r |= R[0] | R[1]
            elif base in ("v_add_co_u32", "v_sub_co_u32", "v_addc_co_u32", "v_subb_co_u32", "v_mad_u64_u32"):
                w |= R[0] | R[1]
                for x in R[2:]:
                    r |= x
            elif not R:
                pass
            else:
                w |= R[0]
                for x in R[1:]:
                    r |= x
                if base.startswith(("v_fmac", "v_dot2c", "v_writelane", "v_pk_fmac")) or self.is_dpp:
                    r |= R[0]
                if base == "v_cndmask_b32" and len(ops) == 3:
                    r |= {"vcc"}
        elif self.is_vmem:
            if "store" in base or "atomic" in base:
                for x in R:
                    r |= x
            elif self.is_lds_dma:
                for x in R:
                    r |= x
                r |= {"m0"}
            else:
                w |= R[0]
                for x in R[1:]:
                    r |= x
        elif self.is_ds:
            if base.startswith(("ds_write", "ds_add", "ds_max")) and "rtn" not in base:
                for x in R:
                    r |= x
            else:
                w |= R[0]
                for x in R[1:]:
                    r |= x
        elif base.startswith("s_"):
            if base.startswith(("s_cmp", "s_cbranch", "s_branch", "s_waitcnt", "s_nop", "s_barrier", "s_endpgm",
                                "s_setprio", "s_sleep", "s_bitcmp")):
                for x in R:
                    r |= x
            else:
                if R:
                    w |= R[0]
                for x in R[1:]:
                    r |= x
                if "saveexec" in base:
                    w |= {"exec"}
                    r |= {"exec"}
        self.w, self.r = w, r
        self.wide_store = self.is_vmem and "store" in base and base.endswith(("x3", "x4"))
        if self.wide_store:
            self.store_data = R[0] if base.startswith("buffer") else R[1]

    def states(self):
        if self.mn == "s_nop":
            return int(self.ops[0], 0) + 1
        return 1 if self.mn else 0


def _isv(s):
    return {x for x in s if x[0] in "va" and x not in ("vcc",)}


def _iss(s):
    return {x for x in s if x[0] == "s" or x == "vcc"}


def need(p, c):
    n = 0
    if p.is_valu:
        pv = _isv(p.w)
        ps = _iss(p.w)
        if c.is_mfma and pv & c.r:
            n = max(n, 3 if p.is_dot else 2)
        if c.is_vmem and ps & c.r:
            n = max(n, 5)
        if c.is_valu and ps & c.r:
            n = max(n, 4 if c.base in ("v_readlane_b32", "v_writelane_b32") else 2)
        if c.is_valu and c.base in ("v_readlane_b32", "v_readfirstlane_b32") and pv & c.r:
            n = max(n, 1)
        if p.is_trans and c.is_valu and pv & c.r:
            n = max(n, 1)
        if p.is_trans and (c.is_vmem or c.is_ds) and pv & c.r:
            n = max(n, 1)
        if c.is_valu and (c.is_perml or c.is_dpp) and pv & c.r:
            n = max(n, 2)
        if p.is_dot:
            if c.is_dot and c.base == p.base:
                srcs = set()
                for o in c.ops[1:3]:
                    srcs |= regs_of(o)
                if pv & srcs:
                    n = max(n, 3)
            elif pv & (c.r | c.w):
                n = max(n, 3)
        if "exec" in p.w and (c.is_mfma or c.is_perml or c.is_dpp or c.base in ("v_readlane_b32", "v_readfirstlane_b32")):
            n = max(n, 5)
        if ("op_sel" in p.mods and not p.base.startswith("v_pk")) and c.is_valu and pv & c.r:
            n = max(n, 1)
        if ps and c.base.startswith("s_") and ps & c.r:
            n = max(n, 1)
    if p.is_mfma:
        big = {8: 12, 4: 8, 2: 5}[p.passes]
        if c.is_mfma:
            if p.D & (c.A | c.B):
                n = max(n, big)
            if p.D & c.C:
                if not (p.D == c.C and p.passes == c.passes):
                    n = max(n, {8: 10, 4: 6, 2: 4}[p.passes])
                elif p.passes == 2:
                    n = max(n, 2)
            elif p.D & c.D:
                n = max(n, big)
        elif c.is_valu or c.is_vmem or c.is_ds:
            if p.D & (c.r | c.w):
                n = max(n, big)
        if c.is_valu and p.C & c.w:
            n = max(n, 7 if p.passes == 8 else 3)
        if (c.is_ds or c.is_vmem) and p.C & c.w:
            n = max(n, 7 if p.passes == 8 else 3)
    if p.is_salu and "m0" in p.w and c.is_lds_dma:
        n = max(n, 1)
    if p.mn and getattr(p, "wide_store", False) and (c.is_valu or c.is_mfma) and p.store_data & c.w:
        n = max(n, 2)
    if p.mn and getattr(p, "wide_store", False) and (c.is_ds or c.is_vmem) and p.store_data & c.w:
        n = max(n, 1)
    return n


def hazard_pass(lines):
    changed = True
    it = 0
    while changed:
        changed = False
        it += 1
        ins = [Ins(l) for l in lines]
        labels = {x.label: i for i, x in enumerate(ins) if x.label}
        preds_by_label = {}
        for i, x in enumerate(ins):
            if x.mn.startswith(("s_branch", "s_cbranch")) and x.ops and x.ops[0] in labels:
                preds_by_label.setdefault(labels[x.ops[0]], []).append(i)

        def short(ci, i, dist, depth=0):
            worst = 0
            c = ins[ci]
            while i >= 0 and dist < 20:
                p = ins[i]
                if p.label:
                    if depth < 3:
                        for b in preds_by_label.get(i, []):
                            worst = max(worst, short(ci, b, dist, depth + 1))
                    i -= 1
                    continue
                if p.mn in ("s_endpgm",):
                    return worst
                if p.mn == "s_branch" and dist > 0 and not (depth and i == start_i[0]):
                    pass
                if p.mn:
                    worst = max(worst, need(p, c) - dist)
                    dist += p.states()
                i -= 1
            return worst

        out = []
        for i, x in enumerate(ins):
            if x.mn and not changed:
                start_i = [i]
                s = short(i, i - 1, 0)
                if s > 0:
                    while s > 16:
                        out.append("    s_nop 15")
                        s -= 16
                    out.append(f"    s_nop {s - 1}")
                    changed = True
            out.append(lines[i])
        lines = out
        if it > 5000:
            raise RuntimeError("hazard pass does not converge")
    return lines


def hazard_pass_fast(lines):
    out = []
    hist = []
    for l in lines:
        x = Ins(l)
        if x.mn:
            dist, worst = 0, 0
            for p in reversed(hist):
                if dist >= 20:
                    break
                if p.mn == "s_endpgm":
                    break
                if p.mn:
                    worst = max(worst, need(p, x) - dist)
                    dist += p.states()
            while worst > 0:
                k = min(worst, 16)
                t = f"    s_nop {k - 1}"
                out.append(t)
                hist.append(Ins(t))
                worst -= k
        out.append(l)
        hist.append(x)
        if len(hist) > 64:
            hist = hist[-64:]
    return hazard_pass(out)


class Asm:
    def __init__(self):
        self.lines = []
        self.vm = []
        self.lg = []

    def __call__(self, text, tag=None, maybe=False):
        for l in text.split("\n"):
            l = l.strip()
            if not l:
                continue
            if l.endswith(":") or l.startswith("."):
                self.lines.append(l)
                continue
            self.lines.append("    " + l)
            mn = l.split()[0]
            if maybe:
                continue
            if mn.startswith(("buffer_", "global_")):
                self.vm.append(tag)
            elif mn.startswith("ds_"):
                self.lg.append(tag)

    def comment(self, t):
        self.lines.append("    ; " + t)

    def _count_after(self, lst, tags):
        if not isinstance(tags, (list, tuple, set)):
            tags = [tags]
        last = -1
        for i, t in enumerate(lst):
            if t in tags:
                last = i
        assert last >= 0, f"tag {tags} never issued"
        return len(lst) - 1 - last

    def wait(self, vm=None, lg=None):
        parts = []
        if vm is not None:
            n = self._count_after(self.vm, vm)
            n = min(n, 62)
            parts.append(f"vmcnt({n})")
        if lg is not None:
            n = min(self._count_after(self.lg, lg), 14)
            parts.append(f"lgkmcnt({n})")
        self("s_waitcnt " + " ".join(parts))

    def srd(self, d, lo, nbytes, add=0):
        if add:
            self(f"s_add_u32 s{d}, s{lo}, {add}\ns_addc_u32 s{d+1}, s{lo+1}, 0")
        else:
            self(f"s_mov_b32 s{d}, s{lo}\ns_mov_b32 s{d+1}, s{lo+1}")
        self(f"s_mov_b32 s{d+2}, {nbytes}\ns_mov_b32 s{d+3}, 0x20000")


def kernel_head(name):
    return [f".globl {name}", ".p2align 8", f".type {name},@function", f"{name}:"]


def kernel_desc(name, vgpr, sgpr=102, accum=None):
    if accum is None:
        accum = (vgpr + 3) // 4 * 4
    return [".p2align 6", f".amdhsa_kernel {name}", f"  .amdhsa_next_free_vgpr {vgpr}",
            f"  .amdhsa_next_free_sgpr {sgpr}", f"  .amdhsa_accum_offset {accum}",
            "  .amdhsa_group_segment_fixed_size 0", "  .amdhsa_kernarg_size 80",
            "  .amdhsa_user_sgpr_count 2", "  .amdhsa_user_sgpr_kernarg_segment_ptr 1",
            "  .amdhsa_system_sgpr_workgroup_id_x 1",
            "  .amdhsa_float_denorm_mode_32 3", "  .amdhsa_float_denorm_mode_16_64 3",
            ".end_amdhsa_kernel"]


def vr(a, n=1):
    return f"v{a}" if n == 1 else f"v[{a}:{a+n-1}]"


def sr(a, n=1):
    return f"s{a}" if n == 1 else f"s[{a}:{a+n-1}]"
```

```python
import sys, math, struct
sys.path.insert(0, "dev")
from asmlib import *

S, D, H, DH, DF = 2048, 448, 16, 28, 1792
XB = S * D * 2
O_OFF = 0
H_OFF = 2 << 20
HH_OFF = 4 << 20
ST_OFF = 12 << 20
CS_OFF = 13 << 20
KV_OFF = 16 << 20
Q_OFF = 24 << 20
IMGB = 16 * 144 * 1024
KVB = 16 * 72 * 4096
QB = 16 * 128 * 1024
HHB = S * DF * 2
STB = 14 * S * 8
CSB = 2 * DF * 4
WFB = D * DF * 2
KA_X, KA_WQKV, KA_WO, KA_WG, KA_WU, KA_WD, KA_OUT, KA_WS = 0, 8, 16, 32, 40, 48, 56, 72
ONES_BF16 = 0x3F803F80
OOB = 0x40000000
DBG_OFF = 32 << 20


class Cfg:
    stamp = False
    opts = {}


def opt(name, default):
    return Cfg.opts.get(name, default)


def f32bits(x):
    return struct.unpack("<I", struct.pack("<f", x))[0]


def fx(x):
    return hex(f32bits(x))


def stamp(a, i):
    if Cfg.stamp:
        a(f"s_memtime s[{70+2*i}:{71+2*i}]")


def stamp_rt(a, i):
    if Cfg.stamp:
        a(f"s_memrealtime s[{70+2*i}:{71+2*i}]")


def stamp_begin(a):
    if Cfg.stamp:
        stamp_rt(a, 0)
        stamp(a, 1)


def stamp_flush(a, kidx, n=12):
    if not Cfg.stamp:
        return
    a("s_mov_b64 exec, -1")
    a("s_waitcnt vmcnt(0) lgkmcnt(0)")
    a(f"s_memtime s[{70+2*(n-2)}:{71+2*(n-2)}]")
    a(f"s_memrealtime s[{70+2*(n-1)}:{71+2*(n-1)}]")
    a("s_load_dwordx2 s[68:69], s[0:1], 72")
    a("s_waitcnt lgkmcnt(0)")
    a.srd(96, 68, 1 << 20, DBG_OFF + (kidx << 20))
    a("s_lshl_b32 s3, s2, 4\ns_add_u32 s3, s3, s36\ns_lshl_b32 s3, s3, 6")
    for i in range(n):
        a(f"v_mov_b32 v{4+i}, s{70+2*i}")
    a("v_mov_b32 v3, 0\ns_mov_b64 exec, 1")
    for i in range(0, n, 4):
        a(f"buffer_store_dwordx4 v[{4+i}:{7+i}], v3, s[96:99], s3 offen offset:{4*i}")


def lane_wave(a, vlane=1, swave=36):
    a(f"v_and_b32 v{vlane}, 63, v0")
    a(f"v_lshrrev_b32 v2, 6, v0")
    a(f"v_readfirstlane_b32 s{swave}, v2")
```

```python
from common import *

def gemm64(name, is_kb):
    a = Asm()
    nch = 8 if is_kb else 28
    nblk = nch * 4
    wstep = 56 * 896 if is_kb else 64 * 896
    wbytes = D * 896 if is_kb else DF * 896
    NS, LA = 7, 4
    kidx = 2 if is_kb else 4
    stamp_begin(a)
    a("s_load_dwordx2 s[4:5], s[0:1], %d" % KA_WS)
    a("s_load_dwordx2 s[6:7], s[0:1], %d" % (KA_WO if is_kb else KA_WD))
    a("s_load_dwordx2 s[8:9], s[0:1], %d" % (KA_X if is_kb else KA_OUT))
    if is_kb:
        a("s_load_dwordx4 s[12:15], s[0:1], %d" % KA_WG)
    lane_wave(a)
    a("s_cmp_ge_u32 s2, 224")
    a(f"s_cbranch_scc1 {name}_alt")
    a("s_and_b32 s57, s2, 7\ns_lshr_b32 s58, s2, 3\ns_and_b32 s39, s58, 3\ns_lshl_b32 s37, s57, 2\n"
      "s_add_u32 s37, s37, s39\ns_lshr_b32 s38, s58, 2")
    a("s_lshl_b32 s42, s38, 7")
    a("s_cmp_lt_u32 s36, 4")
    a(f"s_cbranch_scc1 {name}_cons")
    a("s_sub_u32 s59, s36, 4\ns_lshr_b32 s40, s59, 1\ns_and_b32 s41, s59, 1")
    a(f"s_lshl_b32 s48, s37, 1\ns_add_u32 s48, s48, s40\ns_mul_i32 s48, s48, {nblk*1024}\ns_lshl_b32 s44, s41, 11\n"
      "s_add_u32 s48, s48, s44\nv_lshlrev_b32 v10, 4, v1")
    a("v_lshrrev_b32 v3, 3, v1\nv_and_b32 v4, 7, v1\nv_bfe_u32 v5, v1, 4, 1")
    a(f"s_mul_i32 s44, s40, {28 if is_kb else 32}\ns_lshl_b32 s45, s41, 4\ns_add_u32 s44, s44, s45")
    a("v_add_u32 v6, s44, v3\nv_mul_u32_u24 v6, 896, v6")
    a("v_lshlrev_b32 v7, 2, v5\nv_xor_b32 v7, v4, v7\nv_lshl_add_u32 v12, v7, 4, v6\nv_add_u32 v12, s42, v12")
    a(f"v_add_u32 v13, {8*896 - 1024}, v12")
    a("s_lshl_b32 s43, s59, 12\ns_mov_b32 s49, 0")
    a("s_waitcnt lgkmcnt(0)")
    stamp(a, 2)
    a.srd(16, 4, 64 * nblk * 1024, O_OFF if is_kb else HH_OFF)
    a(f"s_sub_u32 s20, s6, 2048\ns_subb_u32 s21, s7, 0\ns_mov_b32 s22, {wbytes + 2048}\ns_mov_b32 s23, 0x20000")

    def dma(m0expr):
        a(m0expr)
        a("buffer_load_dwordx4 v10, s[16:19], s48 offen lds")
        a("buffer_load_dwordx4 v10, s[16:19], s48 offen offset:1024 lds")
        a("buffer_load_dwordx4 v12, s[20:23], s49 offen offset:2048 lds")
        a("buffer_load_dwordx4 v13, s[20:23], s49 offen offset:3072 lds")
        a(f"s_add_u32 s48, s48, 4096\ns_add_u32 s49, s49, {wstep}")
    for c in range(LA):
        dma(f"s_add_u32 m0, s43, {c*16384}")
    stamp(a, 3)
    a(f"s_add_u32 s46, s43, {LA*16384}\ns_add_u32 s47, s43, {NS*16384}\ns_mov_b32 s45, {nch-LA}")
    a(f"{name}_lloop:")
    a(f"s_waitcnt vmcnt({4*(LA-1)})\ns_barrier")
    dma("s_mov_b32 m0, s46")
    a("s_add_u32 s46, s46, 16384\ns_cmp_eq_u32 s46, s47\ns_cselect_b32 s46, s43, s46")
    a(f"s_sub_u32 s45, s45, 1\ns_cmp_lg_u32 s45, 0\ns_cbranch_scc1 {name}_lloop")
    stamp(a, 4)
    for i in range(LA):
        a(f"s_waitcnt vmcnt({4*(LA-1-i)})\ns_barrier")
    stamp(a, 5)
    stamp_flush(a, kidx)
    a("s_endpgm")
    a(f"{name}_cons:")
    EP = NS * 16384
    a("s_and_b32 s44, s36, 1\ns_lshr_b32 s45, s36, 1")
    a("s_lshl_b32 s46, s37, 6\ns_lshl_b32 s47, s44, 5\ns_add_u32 s46, s46, s47")
    a("v_lshrrev_b32 v6, 2, v1\nv_add_u32 v8, s46, v6\nv_mul_u32_u24 v14, 896, v8")
    a("v_and_b32 v7, 3, v1\nv_lshl_add_u32 v14, v7, 4, v14")
    a("s_lshl_b32 s47, s45, 6\ns_add_u32 s47, s47, s42\nv_add_u32 v14, s47, v14")
    a("s_lshl_b32 s52, s37, 1\ns_add_u32 s52, s52, s44\ns_mul_i32 s52, s52, 28\ns_lshl_b32 s53, s38, 2\n"
      "s_add_u32 s52, s52, s53\ns_lshl_b32 s53, s45, 1\ns_add_u32 s52, s52, s53\ns_lshl_b32 s52, s52, 10\n"
      "v_lshlrev_b32 v13, 4, v1")
    a(f"s_mul_i32 s51, s36, 2560\ns_add_u32 s51, s51, {EP}")
    RES = 96
    if is_kb:
        a(f"v_add_u32 v15, {16*896 - 1024}, v14\ns_mov_b32 m0, s51")
        a("s_waitcnt lgkmcnt(0)")
        stamp(a, 2)
        a.srd(24, 8, XB)
        a("buffer_load_dwordx4 v14, s[24:27], 0 offen lds", tag="res")
        a("buffer_load_dwordx4 v15, s[24:27], 0 offen offset:1024 lds", tag="res")
        a.srd(28, 4, XB, H_OFF)
        a.srd(32, 4, STB, ST_OFF)
    else:
        a(f"v_add_u32 v15, {16*896}, v14")
        a("s_waitcnt lgkmcnt(0)")
        stamp(a, 2)
        a.srd(24, 4, XB, H_OFF)
        a(f"buffer_load_dwordx4 v[{RES}:{RES+3}], v13, s[24:27], s52 offen", tag="res")
        a(f"buffer_load_dwordx4 v[{RES+4}:{RES+7}], v13, s[24:27], s52 offen offset:1024", tag="res")
        a.srd(28, 8, XB)
    HA, WA = 104, 106
    a("v_and_b32 v3, 31, v1\nv_lshrrev_b32 v4, 5, v1")
    a(f"s_lshl_b32 s47, s44, 13\nv_add_u32 v{HA}, s47, v13\nv_add_u32 v{HA+1}, 0x10000, v{HA}")
    if is_kb:
        a("v_lshlrev_b32 v10, 6, v3\nv_lshl_add_u32 v10, v4, 3, v10\nv_add_u32 v10, s51, v10")
        a(f"v_add_u32 v9, s46, v3\nv_lshlrev_b32 v9, 4, v9\ns_mul_i32 s54, s38, {S*16}\ns_lshl_b32 s53, s45, 3\n"
          f"s_add_u32 s54, s54, s53\ns_mov_b32 s55, {ONES_BF16}")
    else:
        a("v_mul_u32_u24 v10, 80, v3\nv_lshl_add_u32 v10, v4, 3, v10\nv_add_u32 v10, s51, v10")
        a("v_mul_u32_u24 v11, 80, v6\nv_lshl_add_u32 v11, v7, 4, v11\nv_add_u32 v11, s51, v11")
    a("v_bfe_u32 v3, v1, 2, 2\nv_lshl_add_u32 v5, v4, 2, v3\nv_lshlrev_b32 v5, 7, v5")
    a("v_bfe_u32 v6, v1, 4, 1\nv_lshlrev_b32 v6, 1, v6\nv_bfe_u32 v7, v1, 1, 1\nv_add_u32 v6, v6, v7")
    a("s_lshl_b32 s47, s45, 2\nv_add_u32 v6, s47, v6")
    a("v_lshrrev_b32 v7, 1, v3\nv_lshlrev_b32 v7, 2, v7\nv_xor_b32 v6, v6, v7")
    a(f"v_lshl_add_u32 v5, v6, 4, v5\nv_and_b32 v7, 1, v1\nv_lshl_add_u32 v{WA}, v7, 3, v5")
    a(f"v_add_u32 v{WA}, 2048, v{WA}\nv_add_u32 v{WA+1}, 0x10000, v{WA}")
    a("s_mov_b32 s50, 0xffff0000")
    a.wait(vm="res")
    if is_kb:
        for g in range(4):
            a(f"ds_read_b64 v[{RES+2*g}:{RES+2*g+1}], v10 offset:{16*g}")
        a("s_waitcnt lgkmcnt(0)")
    for j in range(8):
        a(f"v_lshlrev_b32 v{16+2*j}, 16, v{RES+j}\nv_and_b32 v{17+2*j}, s50, v{RES+j}")
    stamp(a, 3)
    for c in range(nch + 1):
        slot = c % NS
        if c < nch:
            a("s_barrier")
        if c == 0: stamp(a, 4)
        if c == 1: stamp(a, 5)
        if c == nch // 2: stamp(a, 6)
        if c == nch - 1: stamp(a, 7)
        hi = 0 if slot < 4 else 1
        so = (slot % 4) * 16384
        fb = 32 + 32 * (c & 1)
        fbp = 32 + 32 * ((c - 1) & 1)
        for s in range(4):
            if c:
                a.wait(lg=[("f", c - 1, s)])
                a(f"v_mfma_f32_32x32x16_bf16 v[16:31], v[{fbp+4+8*s}:{fbp+7+8*s}], v[{fbp+8*s}:{fbp+3+8*s}], v[16:31]")
            if c < nch:
                a(f"ds_read_b128 v[{fb+8*s}:{fb+3+8*s}], v{HA+hi} offset:{so + (s >> 1)*4096 + (s & 1)*1024}", tag=("f", c, s))
                a(f"ds_read_b64_tr_b16 v[{fb+4+8*s}:{fb+5+8*s}], v{WA+hi} offset:{so + s*4096}", tag=("f", c, s))
                a(f"ds_read_b64_tr_b16 v[{fb+6+8*s}:{fb+7+8*s}], v{WA+hi} offset:{so + s*4096 + 1024}", tag=("f", c, s))
    stamp(a, 8)
    if is_kb:
        fl = " sc1" if opt("kb_st", 1) else ""
        for m in range(2):
            for i in range(4):
                a(f"v_cvt_pk_bf16_f32 v{32+4*m+i}, v{16+8*m+2*i}, v{17+8*m+2*i}")
            a(f"buffer_store_dwordx4 v[{32+4*m}:{35+4*m}], v13, s[28:31], s52 offen offset:{1024*m}{fl}")
        for j in range(8):
            c0, c1 = ("0", "0") if j == 0 else ("v40", "v41")
            a(f"v_dot2_f32_bf16 v40, v{32+j}, s55, {c0}\nv_dot2_f32_bf16 v41, v{32+j}, v{32+j}, {c1}")
        a("v_mov_b32 v42, v40\nv_mov_b32 v43, v41\nv_permlane32_swap_b32 v40, v42\nv_permlane32_swap_b32 v41, v43\n"
          "v_add_f32 v40, v40, v42\nv_add_f32 v41, v41, v43")
        a("s_mov_b32 exec_hi, 0")
        a("buffer_store_dwordx2 v[40:41], v9, s[32:35], s54 offen")
    else:
        fl = " sc1" if opt("kd_st", 0) else ""
        for g in range(4):
            a(f"v_cvt_pk_bf16_f32 v{32+2*g}, v{16+4*g}, v{17+4*g}\nv_cvt_pk_bf16_f32 v{33+2*g}, v{18+4*g}, v{19+4*g}")
            a(f"ds_write_b64 v10, v[{32+2*g}:{33+2*g}] offset:{16*g}", tag="ew")
        a("ds_read_b128 v[40:43], v11", tag="er0")
        a(f"ds_read_b128 v[44:47], v11 offset:{16*80}", tag="er1")
        for i in range(2):
            a.wait(lg=f"er{i}")
            a(f"buffer_store_dwordx4 v[{40+4*i}:{43+4*i}], v{14+i}, s[28:31], 0 offen{fl}")
    stamp(a, 9)
    stamp_flush(a, kidx)
    a("s_endpgm")
    a(f"{name}_alt:")
    if is_kb:
        colsum(a, name)
    a("s_endpgm")
    return a.lines, 112, NS * 16384 + 4 * 2560


def colsum(a, name):
    a("s_cmp_ge_u32 s2, 252")
    a(f"s_cbranch_scc1 {name}_end")
    a("s_sub_u32 s37, s2, 224")
    a("s_cmp_ge_u32 s37, 14\ns_cselect_b32 s38, 14, 0")
    a("s_sub_u32 s38, s37, s38\ns_lshl_b32 s38, s38, 8")
    a(f"v_lshrrev_b32 v3, 4, v1\ns_mul_i32 s39, s36, 56\nv_add_u32 v3, s39, v3\nv_mul_u32_u24 v3, {DF*2}, v3")
    a("v_and_b32 v4, 15, v1\nv_lshl_add_u32 v3, v4, 4, v3\nv_add_u32 v3, s38, v3")
    a("s_waitcnt lgkmcnt(0)")
    a("s_cmp_ge_u32 s37, 14\ns_cselect_b32 s16, s14, s12\ns_cselect_b32 s17, s15, s13")
    a(f"s_mov_b32 s18, {WFB}\ns_mov_b32 s19, 0x20000")
    for i in range(14):
        a(f"s_mov_b32 s40, {i*4*DF*2}")
        a(f"buffer_load_dwordx4 v[{24+4*i}:{27+4*i}], v3, s[16:19], s40 offen", tag=("cs", i))
    a.srd(20, 4, CSB, CS_OFF)
    a("s_mov_b32 s50, 0xffff0000")
    for i in range(14):
        a.wait(vm=[("cs", i)])
        for j in range(4):
            r = 24 + 4*i + j
            if i == 0:
                a(f"v_lshlrev_b32 v{8+2*j}, 16, v{r}\nv_and_b32 v{9+2*j}, s50, v{r}")
            else:
                a(f"v_lshlrev_b32 v16, 16, v{r}\nv_and_b32 v17, s50, v{r}\n"
                  f"v_add_f32 v{8+2*j}, v{8+2*j}, v16\nv_add_f32 v{9+2*j}, v{9+2*j}, v17")
    a("v_lshlrev_b32 v5, 5, v0")
    a("ds_write_b128 v5, v[8:11]\nds_write_b128 v5, v[12:15] offset:16")
    a("s_waitcnt lgkmcnt(0)\ns_barrier")
    a("s_cmp_ge_u32 s36, 2")
    a(f"s_cbranch_scc1 {name}_end")
    a("v_lshlrev_b32 v5, 2, v0")
    for i in range(32):
        a(f"ds_read_b32 v{24+i}, v5 offset:{i*512}")
    a("s_waitcnt lgkmcnt(0)")
    for st in (16, 8, 4, 2, 1):
        for i in range(st):
            a(f"v_add_f32 v{24+i}, v{24+i}, v{24+i+st}")
    a("s_lshl_b32 s41, s37, 9")
    a("buffer_store_dword v24, v5, s[20:23], s41 offen")
    stamp_flush(a, 2)
    a(f"{name}_end:")
```

```python
from common import *

lg = lambda x: x.bit_length() - 1


def rb_head(a, nh):
    groups, nr = 16 // nh, 32 // nh
    a("s_and_b32 s57, s2, 7\ns_lshr_b32 s63, s2, 3")
    a(f"s_lshr_b32 s37, s57, {lg(groups)}\ns_lshl_b32 s37, s37, {lg(nr)}\ns_and_b32 s39, s63, {nr-1}\n"
      "s_add_u32 s37, s37, s39")
    a(f"s_and_b32 s38, s57, {groups-1}\ns_lshl_b32 s38, s38, {lg(nh)}\ns_lshr_b32 s40, s63, {lg(nr)}\n"
      "s_add_u32 s38, s38, s40")


def code_prefetch(a, name, wave):
    a(f"s_getpc_b64 s[32:33]")
    a(f"{name}_pc:")
    a(f"s_sub_u32 s32, s32, {name}_pc-{name}\ns_subb_u32 s33, s33, 0")
    a("s_and_b32 s33, s33, 0xffff")
    a(f"s_mov_b32 s34, code_end-{name}\ns_mov_b32 s35, 0x20000")
    a(f"s_and_b32 s53, s63, 7\ns_lshl_b32 s53, s53, 13\ns_cmp_eq_u32 s36, {wave}\ns_cselect_b32 s53, s53, {OOB}")
    a("v_lshlrev_b32 v3, 7, v1")
    a("buffer_load_dword v2, v3, s[32:35], s53 offen", tag="cpf")


def weight_prefetch(a, lw, t=5, dst=2):
    a(f"s_cmp_eq_u32 {lw}, 0\ns_cselect_b32 s32, s12, s10\ns_cselect_b32 s33, s13, s11")
    a(f"s_cmp_eq_u32 {lw}, 1\ns_cselect_b32 s32, s14, s32\ns_cselect_b32 s33, s15, s33")
    a(f"s_cmp_eq_u32 {lw}, 2\ns_cselect_b32 s32, s28, s32\ns_cselect_b32 s33, s29, s33")
    a(f"s_mov_b32 s34, {WFB}\ns_cmp_lt_u32 {lw}, 3\ns_cselect_b32 s34, s34, {D*D*2}\ns_mov_b32 s35, 0x20000")
    a(f"s_lshl_b32 s56, s63, 1\ns_cmp_lt_u32 {lw}, 3\ns_cselect_b32 s56, s2, s56\ns_mul_i32 s56, s56, 6272")
    a(f"s_add_u32 s55, s56, 6272\ns_cmp_lt_u32 {lw}, 3\ns_cselect_b32 s55, {OOB}, s55")
    a(f"v_lshlrev_b32 v{t}, 7, v1\nv_mov_b32 v{t+1}, {OOB}\nv_cmp_gt_u32 vcc, 49, v1\nv_cndmask_b32 v{t}, v{t+1}, v{t}, vcc")
    if opt("wd_kb", 0):
        a(f"s_cmp_eq_u32 {lw}, 2\ns_cselect_b32 s56, {OOB}, s56")
    a(f"buffer_load_dword v{dst}, v{t}, s[32:35], s56 offen", tag="pf")
    a(f"buffer_load_dword v{dst}, v{t}, s[32:35], s55 offen", tag="pf")


HB = 147456


def k1_kernel(name):
    a = Asm()
    NCH, NS = 7, 5
    SLOT = 28672
    MISC = NS * SLOT
    LDS = MISC + 512
    ng = opt("k1_ng", 8)
    stamp_begin(a)
    a("s_load_dwordx4 s[4:7], s[0:1], %d" % KA_X)
    a("s_load_dwordx2 s[8:9], s[0:1], %d" % KA_WS)
    lane_wave(a)
    a("s_cmp_ge_u32 s2, 256")
    a(f"s_cbranch_scc1 {name}_end")
    rb_head(a, ng)
    a("s_cmp_lt_u32 s36, 4")
    a(f"s_cbranch_scc1 {name}_cons")
    a("s_sub_u32 s40, s36, 4\ns_mul_i32 s42, s38, 168")
    a("v_lshrrev_b32 v3, 3, v1\nv_and_b32 v4, 7, v1\nv_lshrrev_b32 v5, 1, v3")
    a("s_lshl_b32 s46, s40, 5\ns_lshl_b32 s47, s37, 7\ns_add_u32 s46, s46, s47\nv_add_u32 v6, s46, v3\n"
      "v_mul_u32_u24 v6, 896, v6")
    a("v_xor_b32 v7, v4, v5\nv_lshl_add_u32 v12, v7, 4, v6")
    a(f"v_xor_b32 v7, 4, v7\nv_lshl_add_u32 v13, v7, 4, v6\nv_add_u32 v13, {8*896-1024}, v13")
    a(f"v_add_u32 v14, {16*896-2048}, v12\nv_add_u32 v15, {16*896-2048}, v13")
    a(f"s_mul_i32 s41, s40, {16*2688}\ns_add_u32 s41, s41, s42\nv_mov_b32 v9, {OOB}")
    for i in range(3):
        a(f"v_add_u32 v3, {64*i}, v1\nv_mul_u32_u24 v4, 5462, v3\nv_lshrrev_b32 v4, 16, v4\nv_mul_u32_u24 v5, 12, v4\n"
          f"v_sub_u32 v5, v3, v5\nv_mul_u32_u24 v4, 2688, v4\nv_lshl_add_u32 v4, v5, 4, v4\nv_add_u32 v4, s41, v4\n"
          f"v_subrev_u32 v4, {1024*i}, v4\nv_cmp_eq_u32 vcc, 11, v5\nv_cndmask_b32 v{20+i}, v4, v9, vcc")
    a("s_lshl_b32 s49, s40, 12\ns_mul_i32 s44, s40, 3072\ns_add_u32 s44, s44, 16384")
    a("s_waitcnt lgkmcnt(0)")
    stamp(a, 2)
    a.srd(16, 4, XB)
    a.srd(20, 6, D * 3 * D * 2)
    if opt("k1_nox", 0):
        a(f"v_mov_b32 v12, {OOB}\nv_mov_b32 v13, {OOB}\nv_mov_b32 v14, {OOB}\nv_mov_b32 v15, {OOB}")
    if opt("k1_now", 0):
        a(f"v_mov_b32 v20, {OOB}\nv_mov_b32 v21, {OOB}\nv_mov_b32 v22, {OOB}")
    if opt("k1_wal", 0):
        a(f"s_and_b32 s42, s42, {opt('k1_wal', 0) - 1}\nv_subrev_u32 v20, s42, v20\nv_subrev_u32 v21, s42, v21\nv_subrev_u32 v22, s42, v22")
    def chunk(c):
        sl = (c % NS) * SLOT
        a(f"s_add_u32 m0, s49, {sl}\ns_movk_i32 s52, {c*128}")
        for i in range(4):
            a(f"buffer_load_dwordx4 v{12+i}, s[16:19], s52 offen offset:{1024*i} lds", tag=("c", c))
        a(f"s_add_u32 m0, s44, {sl}\ns_mov_b32 s51, {c*64*2688}")
        for i in range(3):
            a(f"buffer_load_dwordx4 v{20+i}, s[20:23], s51 offen offset:{1024*i} lds", tag=("c", c))
    LA = opt("k1_la", 2)
    chunk(0)
    for c in range(1, LA):
        chunk(c)
    stamp(a, 3)
    for c in range(NCH):
        a.wait(vm=[("c", c)])
        if opt("k1_fine", 0) == 1: stamp(a, 3 + c)
        a("s_barrier")
        if opt("k1_fine", 0) == 2: stamp(a, 3 + c)
        if c + LA < NCH:
            chunk(c + LA)
    if not opt("k1_fine", 0): stamp(a, 4)
    stamp_flush(a, 0)
    a("s_endpgm")
    a(f"{name}_cons:")
    a.vm, a.lg = [], []
    def touch():
        T0 = opt("k1_t0", 0)
        nl = 7 - T0
        wl = -(-(448 - 64*T0) * 21 // 256)
        a(f"s_cmp_ge_u32 s36, 2\ns_cbranch_scc1 {name}_nt")
        a(f"v_mul_u32_u24 v28, {65536 // nl + 1}, v1\nv_lshrrev_b32 v28, 16, v28\nv_mul_u32_u24 v29, {nl}, v28\n"
          f"v_sub_u32 v29, v1, v29\nv_mul_u32_u24 v28, 896, v28\nv_lshl_add_u32 v28, v29, 7, v28\nv_lshlrev_b32 v29, 7, v1")
        a(f"s_mul_i32 s53, s2, {8*896}\ns_add_u32 s53, s53, {128*T0}\ns_mul_i32 s54, s2, {wl*128}\n"
          f"s_add_u32 s54, s54, {64*T0*2688}\ns_cmp_eq_u32 s36, 0\ns_cselect_b32 s53, s53, s54\n"
          f"s_cselect_b32 s54, {8*nl}, {wl}\ns_cselect_b64 vcc, -1, 0")
        a(f"v_cndmask_b32 v28, v29, v28, vcc\nv_mov_b32 v29, {OOB}\nv_cmp_gt_u32 vcc, s54, v1\nv_cndmask_b32 v28, v29, v28, vcc")
        a("s_waitcnt lgkmcnt(0)")
        a("s_cmp_eq_u32 s36, 0\ns_cselect_b32 s16, s4, s6\ns_cselect_b32 s17, s5, s7")
        a(f"s_mov_b32 s18, {XB}\ns_cselect_b32 s18, s18, {D*3*D*2}\ns_mov_b32 s19, 0x20000")
        a("buffer_load_dword v2, v28, s[16:19], s53 offen", maybe=True)
        a(f"{name}_nt:")
    if opt("k1_touch", 1) == 1:
        touch()
    if opt("cpf", 1):
        code_prefetch(a, name, 3)
    FR = 32
    AC, DA, SA, CA = 128, 176, 184, 192
    ONES = 24
    a("v_and_b32 v3, 31, v1\nv_lshrrev_b32 v4, 5, v1\ns_lshl_b32 s49, s36, 12")
    a("v_lshlrev_b32 v20, 7, v3\nv_add_u32 v20, s49, v20\nv_bfe_u32 v21, v3, 1, 3\nv_xor_b32 v21, v21, v4")
    for s in range(4):
        a(f"v_xor_b32 v22, {2*s}, v21\nv_lshl_add_u32 v{5+s}, v22, 4, v20")
    a("v_and_b32 v13, 15, v1\nv_lshrrev_b32 v14, 4, v1")
    a("v_bfe_u32 v20, v1, 2, 2\nv_lshl_add_u32 v21, v4, 3, v20\nv_mul_u32_u24 v21, 192, v21\nv_and_b32 v22, 3, v1\n"
      "v_lshlrev_b32 v22, 3, v22\nv_add_u32 v22, 16384, v22\nv_add_u32 v21, v21, v22\nv_and_b32 v23, 1, v14\n"
      "v_lshl_add_u32 v11, v23, 5, v21")
    a("v_lshl_add_u32 v21, v14, 3, v20\nv_mul_u32_u24 v21, 192, v21\nv_add_u32 v21, v21, v22\ns_min_u32 s53, s36, 2\n"
      "s_mul_i32 s53, s53, 56\nv_add_u32 v12, s53, v21")
    for i in range(4):
        a(f"v_mov_b32 v{ONES+i}, {ONES_BF16}")
    for r in range(AC, CA + 8):
        a(f"v_mov_b32 v{r}, 0")
    if opt("k1_touch", 1) == 2:
        touch()
    a("v_and_b32 v20, 3, v1\nv_cmp_eq_u32 s[90:91], 1, v20\nv_cmp_eq_u32 s[92:93], 2, v20\nv_cmp_eq_u32 s[94:95], 3, v20")
    a("v_cmp_lt_u32 s[66:67], 31, v1")
    a(f"s_lshl_b32 s59, s36, 7\ns_add_u32 s59, s59, {MISC}\nv_lshlrev_b32 v18, 2, v13\nv_add_u32 v18, s59, v18")
    a(f"v_lshlrev_b32 v19, 4, v4\nv_add_u32 v19, {MISC}, v19\nv_lshlrev_b32 v17, 4, v1")
    a(f"s_mul_i32 s55, s38, 3\ns_mul_i32 s60, s55, {HB}\ns_lshl_b32 s61, s37, 2\ns_add_u32 s61, s61, s36\n"
      "s_add_u32 s61, s61, 8\ns_lshl_b32 s61, s61, 11\ns_add_u32 s60, s60, s61")
    csc = DH ** -0.5 * math.log2(math.e)
    NEGB = f32bits(-1e30) >> 16
    for i in range(3):
        a(f"s_add_u32 s47, s55, {i}\ns_cmp_lt_u32 s47, 16\ns_cselect_b32 s{40+i}, {fx(csc)}, 1.0\n"
          f"s_lshr_b32 s47, s47, 4\ns_cmp_eq_u32 s47, 1\ns_cselect_b32 s{43+i}, 0, 0x3f80")
    a(f"s_min_u32 s47, s36, 2\ns_add_u32 s47, s47, s55\ns_mul_i32 s62, s47, {HB}\ns_lshl_b32 s61, s37, 10\n"
      f"s_add_u32 s62, s62, s61\ns_lshr_b32 s47, s47, 4\ns_and_b32 s47, s47, s37\ns_and_b32 s47, s47, 1\n"
      f"s_mul_i32 s47, s47, {NEGB}")
    a("s_waitcnt lgkmcnt(0)")
    a.srd(24, 8, 3 * IMGB, KV_OFF)
    a("v_mov_b32 v20, s47\nv_mov_b32 v28, 0\nv_mov_b32 v29, 0\nv_cndmask_b32 v30, 0, v20, s[66:67]\nv_mov_b32 v31, 0")
    a("buffer_store_dwordx4 v[28:31], v17, s[24:27], s62 offen sc1")

    x32 = lambda h, s: FR + 40*h + 4*s
    w32 = lambda h, s, n: FR + 40*h + 8 + 12*s + 4*n
    csf = lambda h, t: FR + 40*h + 32 + 4*t
    def tr(r, ad, off, step, tag):
        return [(f"ds_read_b64_tr_b16 v[{r}:{r+1}], v{ad} offset:{off}", tag),
                (f"ds_read_b64_tr_b16 v[{r+2}:{r+3}], v{ad} offset:{off + step}", tag)]
    def reads(h):
        out = []
        for s in range(2):
            out.append((f"ds_read_b128 v[{x32(h,s)}:{x32(h,s)+3}], v{5+2*h+s}", ("f", h, s, 0)))
            for n in range(3):
                out += tr(w32(h, s, n), 11, (32*h + 16*s)*192 + 56*n, 4*192, ("f", h, s, n))
            out += tr(csf(h, s), 12, 32*h*192 + 32*s, 4*192, ("f", h, s, "c"))
        return out
    def mm(d, A, B):
        return f"v_mfma_f32_16x16x32_bf16 v[{d}:{d+3}], v[{A}:{A+3}], v[{B}:{B+3}], v[{d}:{d+3}]"
    def mm4(d, A, B):
        return f"v_mfma_f32_4x4x4_16b_bf16 v[{d}:{d+3}], v[{A}:{A+1}], v[{B}:{B+1}], v[{d}:{d+3}]"
    def mm32(d, A, B):
        return f"v_mfma_f32_32x32x16_bf16 v[{d}:{d+15}], v[{A}:{A+3}], v[{B}:{B+3}], v[{d}:{d+15}]"
    def half(h, rds, extra={}):
        mms = []
        for s in range(2):
            for n in range(3):
                mms.append((mm32(AC + 16*n, w32(h, s, n), x32(h, s)), ("f", h, s, n), 3))
        if not opt("k1_nost", 0):
            for s in range(2):
                x = x32(h, s)
                mms += [(mm4(DA, x, x), None, 0), (mm4(SA, ONES, x), None, 0), (mm4(DA + 4, x + 2, x + 2), None, 0),
                        (mm4(SA + 4, ONES, x + 2), None, 0)]
        else:
            mms += [("s_nop 0", None, 0)] * 8
        for s in range(2):
            mms.append((mm(CA + 4*s, ONES, csf(h, s)), ("f", h, s, "c") if s else None, 0))
        rds = list(rds)
        for i, (m, dep, k) in enumerate(mms):
            if dep:
                a.wait(lg=[dep])
            if not opt("k1_nomm", 0):
                a(m)
            for _ in range(k):
                if rds:
                    t, tag = rds.pop(0)
                    a(t, tag=tag)
            if i in extra:
                a(extra[i])
        assert not rds
    stamp(a, 3)
    a("s_barrier")
    stamp(a, 4)
    for t, tag in reads(0):
        a(t, tag=tag)
    a(f"s_mov_b32 s47, 0\ns_mov_b32 s46, {SLOT}")
    a(f"{name}_loop:")
    adv = lambda rs: "\n".join(f"v_add_u32 v{r}, s48, v{r}" for r in rs)
    half(0, reads(1),
         {0: f"s_add_u32 s47, s47, 1\ns_cmp_eq_u32 s47, {NS}\ns_cselect_b32 s48, {(-(NS-1)*SLOT) & 0xffffffff}, s46",
          1: adv([5]), 2: adv([6]), 4: adv([7]), 5: adv([8]), 14: adv([11]), 15: adv([12])})
    a(f"s_cmp_eq_u32 s47, {NCH}\ns_cbranch_scc1 {name}_last")
    saved = list(a.lg)
    a("s_barrier")
    half(1, reads(0))
    a(f"s_branch {name}_loop")
    a(f"{name}_last:")
    a.lg = saved
    half(1, [])
    stamp(a, 6)
    ST, T0 = 28, 32
    a(f"ds_write_b32 v18, v{CA}\nds_write_b32 v18, v{CA+4} offset:64")
    for i in range(4):
        a(f"v_add_f32 v{DA+i}, v{DA+i}, v{DA+4+i}")
    a(f"v_add_f32 v{ST}, v{SA}, v{SA+4}")
    a(f"v_cndmask_b32 v{DA}, v{DA}, v{DA+1}, s[90:91]\nv_cndmask_b32 v{DA}, v{DA}, v{DA+2}, s[92:93]\n"
      f"v_cndmask_b32 v{ST+1}, v{DA}, v{DA+3}, s[94:95]")
    a(f"v_mov_b32 v{T0}, v{ST}\nv_mov_b32 v{T0+1}, v{ST+1}")
    a(f"v_permlane32_swap_b32 v{ST}, v{T0}\nv_permlane32_swap_b32 v{ST+1}, v{T0+1}")
    a(f"v_add_f32 v{ST}, v{ST}, v{T0}\nv_add_f32 v{ST+1}, v{ST+1}, v{T0+1}")
    a("s_waitcnt lgkmcnt(0)\ns_barrier")
    CS = 48
    for n in range(3):
        for g in range(4):
            a(f"ds_read_b128 v[{CS+16*n+4*g}:{CS+16*n+4*g+3}], v19 offset:{128*n + 32*g}", tag=("cs", n))
    a(f"v_mul_f32 v{ST}, {fx(-1.0/D)}, v{ST}\nv_mul_f32 v{ST+1}, {fx(1.0/D)}, v{ST+1}")
    a(f"v_fma_f32 v{ST+1}, -v{ST}, v{ST}, v{ST+1}\nv_max_f32 v{ST+1}, 0, v{ST+1}\nv_add_f32 v{ST+1}, {fx(1e-5)}, v{ST+1}")
    a(f"v_rsq_f32 v{T0}, v{ST+1}")
    for n in range(3):
        a.wait(lg=[("cs", n)])
        r0, P = AC + 16*n, 96 + 8*n
        for i in range(8):
            r = r0 + 2*i
            a(f"v_pk_fma_f32 v[{r}:{r+1}], v[{CS+16*n+2*i}:{CS+16*n+2*i+1}], v[{ST}:{ST+1}], v[{r}:{r+1}] op_sel_hi:[1,0,1]")
        a(f"v_mul_f32 v{ST+1}, s{40+n}, v{T0}\nv_mov_b32 v{T0+1}, s{43+n}")
        if n:
            a(f"s_add_u32 s60, s60, {HB}")
        for m in range(2):
            for i in range(4):
                r = r0 + 8*m + 2*i
                a(f"v_pk_mul_f32 v[{r}:{r+1}], v[{r}:{r+1}], v[{ST}:{ST+1}] op_sel:[0,1] op_sel_hi:[1,1]")
            for i in range(4):
                a(f"v_cvt_pk_bf16_f32 v{P+4*m+i}, v{r0+8*m+2*i}, v{r0+8*m+2*i+1}")
            if m:
                a(f"v_cndmask_b32 v{P+6}, v{P+6}, v{T0+1}, s[66:67]\nv_cndmask_b32 v{P+7}, v{P+7}, 0, s[66:67]")
            a(f"buffer_store_dwordx4 v[{P+4*m}:{P+4*m+3}], v17, s[24:27], s60 offen offset:{1024*m}" + (" sc1" if n < opt("k1_st", 3) else ""))
    stamp(a, 9)
    stamp_flush(a, 0)
    a(f"{name}_end:")
    a("s_endpgm")
    return a.lines, 204, LDS, 512


def k2_kernel(name):
    a = Asm()
    NEG = fx(-1e30)
    nh = opt("k2_nh", 2)
    stamp_begin(a)
    a("s_load_dwordx2 s[8:9], s[0:1], %d" % KA_WS)
    a("s_load_dwordx2 s[10:11], s[0:1], %d" % KA_WO)
    a("s_load_dwordx4 s[12:15], s[0:1], %d" % KA_WG)
    a("s_load_dwordx2 s[28:29], s[0:1], %d" % KA_WD)
    lane_wave(a)
    a("s_cmp_ge_u32 s2, 256")
    a(f"s_cbranch_scc1 {name}_end")
    rb_head(a, nh)
    a(f"s_mul_i32 s60, s38, {HB}\ns_lshl_b32 s61, s37, 13\ns_add_u32 s60, s60, s61\ns_mul_i32 s62, s36, 6144\n"
      "s_lshl_b32 s61, s36, 11\ns_add_u32 s61, s61, s60\ns_add_u32 s61, s61, 16384\n"
      f"s_add_u32 s60, s60, s62\ns_add_u32 s60, s60, {IMGB}")
    a("v_lshlrev_b32 v8, 4, v1")
    a("v_lshrrev_b32 v2, 5, v1\nv_lshlrev_b32 v3, 6, v2\nv_xor_b32 v6, v8, v3\nv_xor_b32 v7, 128, v6")
    a("s_waitcnt lgkmcnt(0)")
    stamp(a, 2)
    a.srd(24, 8, 3 * IMGB, KV_OFF)
    QF = 12
    for g in range(2):
        a(f"s_add_u32 m0, s62, {g*3072}\ns_add_u32 s52, s60, {g*3072}")
        for i in range(3):
            a(f"buffer_load_dwordx4 v8, s[24:27], s52 offen offset:{i*1024} lds", tag="k")
    a(f"buffer_load_dwordx4 v[{QF}:{QF+3}], v8, s[24:27], s61 offen", tag="k")
    a(f"buffer_load_dwordx4 v[{QF+4}:{QF+7}], v8, s[24:27], s61 offen offset:1024", tag="k")
    for g in range(2):
        a(f"s_add_u32 m0, s62, {24576 + g*3072}\ns_add_u32 s52, s60, {IMGB + g*3072}")
        for i in range(3):
            a(f"buffer_load_dwordx4 v{6 + ((3*g+i) & 1)}, s[24:27], s52 offen offset:{i*1024} lds", tag="v")
    if opt("k2_pf", 1) == 2:
        weight_prefetch(a, "s36", 224, 226)
    a.srd(20, 8, 2 << 20, O_OFF)
    KF, VF, SS, PP, OA, BU, BD, NM, M = 20, 0, 96, 144, 160, 176, 192, 208, 4
    a(f"v_and_b32 v3, 31, v1\nv_mov_b32 v10, {NEG}\nv_lshlrev_b32 v11, 2, v2\nv_sub_u32 v11, v3, v11")
    for r in range(16):
        a(f"v_cmp_gt_i32 vcc, {8*(r>>2) + (r&3)}, v11\nv_cndmask_b32 v{BU+r}, v10, 0, vcc\nv_cndmask_b32 v{BD+r}, 0, v10, vcc")
    a("s_lshl_b32 s47, s36, 11\nv_add_u32 v9, s47, v8")
    a("v_bfe_u32 v4, v1, 4, 1\nv_and_b32 v5, 1, v1\nv_lshl_add_u32 v10, v4, 1, v5\nv_xor_b32 v10, v10, v2\n"
      "v_lshl_add_u32 v10, v5, 3, v10\nv_lshlrev_b32 v10, 6, v10\nv_lshl_add_u32 v10, v4, 10, v10\n"
      "v_bfe_u32 v4, v1, 2, 2\nv_lshl_add_u32 v10, v4, 4, v10\nv_bfe_u32 v4, v1, 1, 1\nv_lshl_add_u32 v10, v4, 3, v10\n"
      "s_add_u32 s47, s47, 24576\nv_add_u32 v92, s47, v10\nv_xor_b32 v93, 128, v92")
    a("s_lshl_b32 s42, s37, 2\ns_add_u32 s42, s42, s36\ns_lshl_b32 s42, s42, 4\ns_add_u32 s42, s42, s38\n"
      "s_lshl_b32 s42, s42, 11\nv_cmp_lt_u32 s[66:67], 31, v1")
    stamp(a, 3)
    a.wait(vm="k")
    a("s_barrier")
    stamp(a, 4)
    for i in range(18):
        a(f"ds_read_b128 v[{KF+4*i}:{KF+4*i+3}], v9 offset:{i*1024}", tag=("kf", i))
    if opt("k2_pf", 1) == 1:
        weight_prefetch(a, "s36", 224, 226)
    sreg = lambda j: SS + 16*(j % 3)
    def smm(j, cu, cd, cn):
        cc = cu if j == 0 else (cd if j == 8 else cn)
        r = sreg(j)
        return [f"v_mfma_f32_32x32x16_bf16 v[{r}:{r+15}], v[{KF+8*j}:{KF+8*j+3}], v[{QF}:{QF+3}], {cc}",
                f"v_mfma_f32_32x32x16_bf16 v[{r}:{r+15}], v[{KF+8*j+4}:{KF+8*j+7}], v[{QF+4}:{QF+7}], v[{r}:{r+15}]"]
    def mx(j):
        r = sreg(j)
        out = []
        for i in range(8):
            m = M + (i & 1)
            if j == 0 and i < 2:
                out.append(f"v_max_f32 v{m}, v{r+2*i}, v{r+2*i+1}")
            else:
                out.append(f"v_max3_f32 v{m}, v{m}, v{r+2*i}, v{r+2*i+1}")
        return out
    vrd = []
    for j in range(9):
        for c in range(2):
            for u in range(2):
                r = VF + 8*j + 4*c + 2*u
                vrd.append((f"ds_read_b64_tr_b16 a[{r}:{r+1}], v{92+u} offset:{j*2048 + c*256}", ("vf", j)))
    R = lambda x: f"v[{x}:{x+15}]"
    for j in range(11):
        mms = smm(j, R(BU), R(BD), "0") if j < 9 else []
        va = mx(j - 2) if j >= 2 else []
        if j == 5:
            a.wait(vm="v")
            a("s_barrier")
        for i in range(2):
            if mms:
                a.wait(lg=[("kf", 2*j + i)])
                a(mms[i])
            for v in va[4*i:4*i+4]:
                a(v)
            if j >= 5:
                for _ in range(3):
                    if vrd:
                        t, tag = vrd.pop(0)
                        a(t, tag=tag)
    assert not vrd
    stamp(a, 5)
    a(f"v_max_f32 v{M}, v{M}, v{M+1}\nv_mov_b32 v{M+1}, v{M}\nv_permlane32_swap_b32 v{M}, v{M+1}\n"
      f"v_max_f32 v{M}, v{M}, v{M+1}")
    for r in range(16):
        a(f"v_sub_f32 v{BU+r}, v{BU+r}, v{M}")
    for m in smm(0, R(BU), R(BD), R(NM)):
        a(m)
    for r in range(16):
        a(f"v_sub_f32 v{NM+r}, 0, v{M}")
    for m in smm(1, R(BU), R(BD), R(NM)):
        a(m)
    late = [f"v_sub_f32 v{BD+r}, v{BD+r}, v{M}" for r in range(16)]
    def pv(j):
        pr = PP + 8*(j & 1)
        cc = "0" if j == 0 else R(OA)
        return [f"v_mfma_f32_32x32x16_bf16 {R(OA)}, a[{VF+8*j}:{VF+8*j+3}], v[{pr}:{pr+3}], {cc}",
                f"v_mfma_f32_32x32x16_bf16 {R(OA)}, a[{VF+8*j+4}:{VF+8*j+7}], v[{pr+4}:{pr+7}], {R(OA)}"]
    for j in range(9):
        r, pr = sreg(j), PP + 8*(j & 1)
        va = [f"v_exp_f32 v{r+i}, v{r+i}" for i in range(16)]
        va += [f"v_cvt_pk_bf16_f32 v{pr+i}, v{r+2*i}, v{r+2*i+1}" for i in range(8)]
        if j < 4:
            va += late[4*j:4*j+4]
        mf = (pv(j - 1) if j else []) + (smm(j + 2, R(BU), R(BD), R(NM)) if j + 2 < 9 else [])
        if j:
            a.wait(lg=[("vf", j - 1)])
        k = 0
        for idx, v in enumerate(va):
            a(v)
            if idx % 5 == 2 and k < len(mf):
                a(mf[k]); k += 1
        assert k == len(mf)
    a.wait(lg=[("vf", 8)])
    for m in pv(8):
        a(m)
    stamp(a, 6)
    a(f"v_mov_b32 v{M}, v{OA+12}\nv_mov_b32 v{M+1}, v{OA+12}\nv_permlane32_swap_b32 v{M}, v{M+1}\nv_rcp_f32 v{M}, v{M+1}")
    for m in range(2):
        for i in range(4):
            r = OA + 8*m + 2*i
            a(f"v_pk_mul_f32 v[{r}:{r+1}], v[{r}:{r+1}], v[{M}:{M+1}] op_sel_hi:[1,0]")
        for i in range(4):
            a(f"v_cvt_pk_bf16_f32 v{20+4*m+i}, v{OA+8*m+2*i}, v{OA+8*m+2*i+1}")
        if m:
            a("v_cndmask_b32 v26, v26, 0, s[66:67]\nv_cndmask_b32 v27, v27, 0, s[66:67]")
        a(f"buffer_store_dwordx4 v[{20+4*m}:{23+4*m}], v8, s[20:23], s42 offen offset:{1024*m}" + (" sc1" if opt("k2_st", 1) else ""))
    stamp(a, 9)
    stamp_flush(a, 1)
    a(f"{name}_end:")
    a("s_endpgm")
    return a.lines, (300, 228), 49152, 256
```

```python
from common import *

def kc_kernel(name):
    a = Asm()
    SLOT = 49152
    AUX = 3 * SLOT
    stamp_begin(a)
    a("s_load_dwordx2 s[4:5], s[0:1], %d" % KA_WS)
    a("s_load_dwordx4 s[12:15], s[0:1], %d" % KA_WG)
    a("s_load_dwordx2 s[6:7], s[0:1], %d" % KA_WD)
    lane_wave(a)
    a("s_cmp_ge_u32 s2, 224")
    a(f"s_cbranch_scc1 {name}_end")
    a("s_and_b32 s57, s2, 7\ns_lshr_b32 s58, s2, 3\ns_lshr_b32 s37, s57, 1\ns_lshl_b32 s37, s37, 2\n"
      "s_and_b32 s39, s58, 3\ns_add_u32 s37, s37, s39\ns_and_b32 s38, s57, 1\ns_mul_i32 s38, s38, 7\n"
      "s_lshr_b32 s60, s58, 2\ns_add_u32 s38, s38, s60")
    a("s_and_b32 s59, s36, 3\ns_lshl_b32 s45, s38, 8")
    a("s_cmp_lt_u32 s36, 8")
    a(f"s_cbranch_scc1 {name}_cons")
    a("s_lshl_b32 s40, s37, 2\ns_add_u32 s40, s40, s59\ns_mul_i32 s40, s40, 28672\nv_lshlrev_b32 v10, 4, v1")
    a("s_lshr_b32 s42, s59, 1\ns_and_b32 s43, s59, 1")
    a("v_lshrrev_b32 v3, 4, v1\ns_lshl_b32 s44, s42, 2\nv_or_b32 v4, s44, v3\nv_bfe_u32 v5, v1, 1, 3\n"
      "v_xor_b32 v4, v4, v5")
    a(f"s_lshl_b32 s44, s43, 2\nv_add_u32 v3, s44, v3\nv_mul_u32_u24 v14, {DF*2}, v3")
    a("v_lshl_add_u32 v14, v4, 5, v14\nv_and_b32 v5, 1, v1\nv_lshl_add_u32 v14, v5, 4, v14\nv_add_u32 v14, s45, v14")
    a(f"v_add_u32 v15, {8*DF*2 - 2048}, v14")
    a("s_lshl_b32 s47, s59, 12\ns_lshl_b32 s48, s42, 14\ns_lshl_b32 s49, s43, 10\ns_add_u32 s48, s48, s49\n"
      "s_add_u32 s48, s48, 16384")
    a("s_waitcnt lgkmcnt(0)")
    stamp(a, 2)
    a.srd(16, 4, XB, H_OFF)
    a("s_cmp_eq_u32 s42, 0\ns_cselect_b32 s20, s12, s14\ns_cselect_b32 s21, s13, s15")
    a(f"s_mov_b32 s22, {WFB}\ns_mov_b32 s23, 0x20000")
    def chunk(c):
        sl = (c % 3) * SLOT
        a(f"s_add_u32 m0, s47, {sl}\ns_add_u32 s52, s40, {c*4096}")
        for i in range(4):
            a(f"buffer_load_dwordx4 v10, s[16:19], s52 offen offset:{1024*i} lds", tag=("a", c))
        for i in range(4):
            a(f"s_add_u32 m0, s48, {sl + i*4096}\ns_mov_b32 s53, {(c*64 + 16*i)*DF*2}")
            tag = ("a", c) if i < 2 else ("b", c)
            a("buffer_load_dwordx4 v14, s[20:23], s53 offen lds", tag=tag)
            a("buffer_load_dwordx4 v15, s[20:23], s53 offen offset:2048 lds", tag=tag)
    def aux():
        a.srd(24, 4, (CS_OFF - ST_OFF) + CSB, ST_OFF)
        a(f"v_lshlrev_b32 v16, 4, v1\nv_lshrrev_b32 v3, 5, v1\nv_mul_u32_u24 v3, {DF*4 - 512}, v3\nv_add_u32 v17, v16, v3")
        a(f"s_lshl_b32 s54, s37, 11\ns_lshl_b32 s55, s43, 10\ns_add_u32 s54, s54, s55\ns_mul_i32 s55, s42, {S*16}\n"
          "s_add_u32 s54, s54, s55\ns_lshl_b32 s56, s59, 10")
        for j in range(3):
            a(f"s_add_u32 m0, s56, {AUX + j*4096}\ns_add_u32 s55, s54, {2*j*S*16}")
            a("buffer_load_dwordx4 v16, s[24:27], s55 offen lds", tag="aux")
        a(f"s_add_u32 m0, s56, {AUX + 3*4096}\ns_add_u32 s55, s54, {6*S*16}\ns_lshl_b32 s61, s38, 9\n"
          f"s_add_u32 s61, s61, {CS_OFF - ST_OFF}\ns_cmp_eq_u32 s59, 3\ns_cselect_b32 s61, {OOB}, s61\n"
          "s_cmp_lt_u32 s59, 2\ns_cselect_b32 s55, s55, s61\ns_cselect_b64 vcc, -1, 0\nv_cndmask_b32 v16, v17, v16, vcc")
        a("buffer_load_dwordx4 v16, s[24:27], s55 offen lds", tag="aux")
    chunk(0)
    a.wait(vm=[("a", 0)])
    a("s_barrier")
    chunk(1)
    stamp(a, 3)
    a.wait(vm=[("b", 0)])
    a("s_barrier")
    chunk(2)
    for c in range(1, 7):
        a.wait(vm=[("b", c)] + (["aux"] if c == 6 else []))
        a("s_barrier")
        if c + 2 < 7:
            chunk(c + 2)
        if c == 4:
            aux()
    stamp(a, 5)
    stamp_flush(a, 3)
    a("s_endpgm")
    a(f"{name}_cons:")
    a.vm, a.lg = [], []
    ACC, FR = 96, 32
    NM, C2, K0, K1 = 160, 162, 164, 166
    acc = lambda b, t: ACC + 32*b + 16*t
    a("s_and_b32 s43, s36, 1\ns_lshr_b32 s44, s36, 1")
    a("s_lshl_b32 s40, s37, 7\ns_lshl_b32 s41, s43, 6\ns_add_u32 s40, s40, s41")
    a("v_and_b32 v3, 31, v1\nv_lshrrev_b32 v4, 5, v1")
    a("s_lshl_b32 s47, s43, 13\nv_lshlrev_b32 v19, 4, v1\nv_add_u32 v20, s47, v19")
    a("v_bfe_u32 v5, v1, 2, 2\nv_bfe_u32 v6, v1, 4, 1\nv_lshl_add_u32 v7, v4, 2, v5\nv_lshlrev_b32 v7, 8, v7")
    a("v_lshl_add_u32 v7, v6, 14, v7\nv_and_b32 v8, 3, v1\nv_lshl_add_u32 v7, v8, 3, v7\nv_add_u32 v7, 16384, v7")
    a("v_lshl_add_u32 v5, v6, 2, v5\ns_lshl_b32 s47, s44, 1\nv_xor_b32 v5, s47, v5")
    a("v_lshl_add_u32 v28, v5, 5, v7\nv_xor_b32 v29, 32, v28")
    for r in range(ACC, ACC + 64):
        a(f"v_mov_b32 v{r}, 0")
    a("s_lshl_b32 s56, s37, 1\ns_add_u32 s56, s56, s43\ns_mul_i32 s56, s56, 224\ns_lshl_b32 s47, s38, 3\n"
      "s_add_u32 s56, s56, s47\ns_lshl_b32 s47, s44, 1\ns_add_u32 s56, s56, s47\ns_lshl_b32 s56, s56, 10\n"
      f"s_add_u32 s55, s56, {112*1024}")
    a(f"s_lshl_b32 s47, s43, 10\ns_add_u32 s47, s47, {AUX}\nv_lshlrev_b32 v16, 4, v1\nv_add_u32 v16, s47, v16")
    a(f"s_lshl_b32 s47, s44, 7\ns_add_u32 s47, s47, {AUX + 14336}\nv_lshlrev_b32 v15, 4, v4\nv_add_u32 v15, s47, v15")
    a("s_waitcnt lgkmcnt(0)")
    stamp(a, 2)
    a.srd(32, 4, HHB, HH_OFF)
    SL, CSR = 32, 64
    hf_ = lambda h, s, b: FR + 32*h + 16*s + 4*b
    wf_ = lambda h, s, t: FR + 32*h + 16*s + 8 + 4*t
    def reads(h):
        out = []
        for s in range(2):
            wo = (2*h + s)*4096
            for i in range(2):
                out.append((f"ds_read_b128 v[{hf_(h,s,i)}:{hf_(h,s,i)+3}], v20 offset:{i*4096 + (2*h + s)*1024}", ("f", h, s)))
                r = wf_(h, s, i)
                out.append((f"ds_read_b64_tr_b16 v[{r}:{r+1}], v{28+i} offset:{wo}", ("f", h, s)))
                out.append((f"ds_read_b64_tr_b16 v[{r+2}:{r+3}], v{28+i} offset:{wo+2048}", ("f", h, s)))
        return out
    def half(h, rds, dowait, extra={}):
        rds = list(rds)
        i = 0
        for s in range(2):
            if dowait:
                a.wait(lg=[("f", h, s)])
            for b, t in ((0, 0), (1, 0), (0, 1), (1, 1)):
                d = acc(b, t)
                a(f"v_mfma_f32_32x32x16_bf16 v[{d}:{d+15}], v[{wf_(h,s,t)}:{wf_(h,s,t)+3}], "
                  f"v[{hf_(h,s,b)}:{hf_(h,s,b)+3}], v[{d}:{d+15}]")
                for _ in range(2):
                    if rds:
                        t_, tag = rds.pop(0)
                        a(t_, tag=tag)
                if i in extra:
                    e = extra[i]
                    e() if callable(e) else a(e)
                i += 1
        assert not rds
    if opt("kc_prio", 1):
        a("s_setprio 1")
    stamp(a, 5)
    a("s_barrier")
    stamp(a, 6)
    for t, tag in reads(0):
        a(t, tag=tag)
    a(f"s_mov_b32 s47, 0\ns_mov_b32 s49, 0\ns_mov_b32 s46, {SLOT}")
    a("s_barrier")
    a(f"{name}_loop:")
    half(0, reads(1), True,
         {0: f"s_add_u32 s47, s47, 1\ns_add_u32 s49, s49, 1\ns_cmp_eq_u32 s49, 3\ns_cselect_b32 s49, 0, s49\n"
             f"s_cselect_b32 s48, {(-2*SLOT) & 0xffffffff}, s46",
          6: "v_add_u32 v20, s48, v20\nv_add_u32 v28, s48, v28\nv_add_u32 v29, s48, v29"})
    a("s_waitcnt lgkmcnt(0)")
    a(f"s_cmp_eq_u32 s47, 7\ns_cbranch_scc1 {name}_last")
    a("s_barrier")
    half(1, reads(0), False)
    a(f"s_branch {name}_loop")
    a(f"{name}_last:")
    k0 = -2.0 * math.sqrt(2.0 / math.pi) * math.log2(math.e)
    sv = []
    for st, n in ((14, 14), (6, 6), (12, 2)):
        sv += [f"v_add_f32 v{SL+i}, v{SL+i}, v{SL+st+i}" for i in range(n)]
    sv += [f"v_add_f32 v{SL+2+i}, v{SL+2+i}, v{SL+4+i}" for i in range(2)]
    sv += [f"v_add_f32 v{SL+i}, v{SL+i}, v{SL+2+i}" for i in range(2)]
    sv += [f"v_mul_f32 v{NM}, {fx(-1.0/D)}, v{SL}", f"v_mul_f32 v{C2}, {fx(1.0/D)}, v{SL+1}",
           f"v_fma_f32 v{C2}, -v{NM}, v{NM}, v{C2}", f"v_mov_b32 v{NM+1}, v{NM}",
           f"v_max_f32 v{C2}, 0, v{C2}", f"v_add_f32 v{C2}, {fx(1e-5)}, v{C2}",
           f"v_permlane32_swap_b32 v{NM}, v{NM+1}",
           f"v_rsq_f32 v13, v{C2}", f"v_mov_b32 v{C2+1}, v{C2}", f"v_mul_f32 v{K0}, {fx(k0)}, v13", "v_mul_f32 v14, v13, v13",
           f"v_mul_f32 v14, v14, v{K0}", f"v_mul_f32 v{K1}, {fx(0.044715)}, v14", f"v_mov_b32 v{K0+1}, v{K0}",
           f"v_mov_b32 v{K1+1}, v{K1}", f"v_permlane32_swap_b32 v{C2}, v{C2+1}", f"v_permlane32_swap_b32 v{K0}, v{K0+1}",
           f"v_permlane32_swap_b32 v{K1}, v{K1+1}"]
    strd = [(f"ds_read_b128 v[{SL+4*p}:{SL+4*p+3}], v16 offset:{p*2048}", "st") for p in range(7)]
    def part(lo, hi, w=False):
        def f():
            if w: a.wait(lg="st")
            for x in sv[lo:hi]:
                a(x)
        return f
    half(1, strd, False, {5: part(0, 8, True), 6: part(8, 16)})
    for t in range(2):
        for q in range(4):
            r = CSR + 16*t + 4*q
            a(f"ds_read_b128 v[{r}:{r+3}], v15 offset:{(q >> 1)*512 + t*64 + (q & 1)*32}", tag="cs")
    if opt("kc_prio", 1):
        a("s_setprio 0")
    part(16, len(sv))()
    stamp(a, 8)
    a.wait(lg="cs")
    T = 20
    def epi(b):
        out = []
        for t in range(2):
            g0, u0 = acc(b, t), acc(b, t) + 8
            sel3 = "op_sel_hi:[1,0,0]" if b == 0 else "op_sel:[0,1,1] op_sel_hi:[1,1,1]"
            selm = "op_sel_hi:[1,0,1]" if b == 0 else "op_sel:[0,1,0] op_sel_hi:[1,1,1]"
            pr = lambda x, j: f"v[{x+2*j}:{x+2*j+1}]"
            out += [f"v_pk_fma_f32 {pr(g0,j)}, {pr(CSR+16*t,j)}, v[{NM}:{NM+1}], {pr(g0,j)} {selm}" for j in range(8)]
            out += [f"v_pk_mul_f32 {pr(T,j)}, {pr(g0,j)}, {pr(g0,j)}" for j in range(4)]
            out += [f"v_pk_fma_f32 {pr(T,j)}, {pr(T,j)}, v[{K1}:{K1+1}], v[{K0}:{K0+1}] {sel3}" for j in range(4)]
            out += [f"v_pk_mul_f32 {pr(T,j)}, {pr(T,j)}, {pr(g0,j)}" for j in range(4)]
            out += [f"v_exp_f32 v{T+j}, v{T+j}" for j in range(8)]
            out += [f"v_pk_mul_f32 {pr(g0,j)}, {pr(g0,j)}, {pr(u0,j)}" for j in range(4)]
            out += [f"v_pk_fma_f32 {pr(T,j)}, {pr(T,j)}, v[{C2}:{C2+1}], v[{C2}:{C2+1}] {sel3}" for j in range(4)]
            out += [f"v_rcp_f32 v{T+j}, v{T+j}" for j in range(8)]
            out += [f"v_pk_mul_f32 {pr(g0,j)}, {pr(g0,j)}, {pr(T,j)}" for j in range(4)]
            out += [f"v_cvt_pk_bf16_f32 v{u0+j}, v{g0+2*j}, v{g0+2*j+1}" for j in range(4)]
            flag = " sc1" if 2*b + t < opt("kc_st", 4) else ""
            out += [f"buffer_store_dwordx4 v[{u0}:{u0+3}], v19, s[32:35], s{56-b} offen offset:{1024*t}{flag}"]
        return out
    for it in epi(0) + epi(1):
        a(it)
    stamp(a, 9)
    stamp_flush(a, 3)
    a(f"{name}_end:")
    a("s_endpgm")
    return a.lines, 168, AUX + 16384
```

```python
from common import *
from k_gemm64 import gemm64
from k_kc import kc_kernel
from k_k1 import k1_kernel, k2_kernel


def build(kernels, path):
    ref = open("sequential_preLN__sliding_block__glu_gated_geglu__prompt.s.ref").read()
    head = [l for l in ref.split("\n") if l.startswith(";") and "@launch" not in l and "Override" not in l
            and "grid=ceil" not in l]
    out = list(head)
    for label, _, _, grid, block, lds in kernels:
        out.append(f"; @launch kernel={label} grid=({grid},1,1) block=({block},1,1) lds={lds}")
    out.append('.amdgcn_target "amdgcn-amd-amdhsa--gfx950"')
    out.append(".text")
    for label, lines, vg, *_ in kernels:
        out += kernel_head(label)
        out += hazard_pass_fast(lines)
    out.append("code_end:")
    out.append("    s_endpgm")
    out.append('.section .rodata,"a"')
    for label, lines, vg, *_ in kernels:
        out += kernel_desc(label, vg[0], accum=vg[1]) if isinstance(vg, tuple) else kernel_desc(label, vg)
    open(path, "w").write("\n".join(out) + "\n")


if __name__ == "__main__":
    args = sys.argv[1:]
    if "--stamp" in args:
        Cfg.stamp = True
        args.remove("--stamp")
    for x in list(args):
        if "=" in x:
            k, v = x.split("=")
            Cfg.opts[k] = int(v)
            args.remove(x)
    k1, k1v, k1l, k1b = k1_kernel("k1_kernel")
    k2, k2v, k2l, k2b = k2_kernel("k2_kernel")
    kb, kbv, kbl = gemm64("kb_kernel", True)
    kd, kdv, kdl = gemm64("kd_kernel", False)
    kc, kcv, kcl = kc_kernel("kc_kernel")
    out = args[0] if args else "t_all.s"
    build([("k1_kernel", k1, k1v, 256, k1b, k1l), ("k2_kernel", k2, k2v, 256, k2b, k2l), ("kb_kernel", kb, kbv, 256, 512, kbl),
           ("kc_kernel", kc, kcv, 224, 768, kcl), ("kd_kernel", kd, kdv, 224, 512, kdl)], out)
```

```python
from common import *

HB = 147456
FL_OFF = 30 << 20
WSB = 48 << 20
WS = "s[72:75]"
NEG = fx(-1e30)
NEGB = f32bits(-1e30) >> 16
SPIN = 1 << 15
lg2 = lambda x: x.bit_length() - 1
N = "mk"
FREG = 65536
FSH = lambda: opt("fsh", 6)
CNT = 163836
FS = lambda: " sc0 sc1" if opt("fs", 1) == 2 else " sc1"


def st(a, i):
    if Cfg.stamp:
        a(f"s_memrealtime s[{76+2*i}:{77+2*i}]")


def st_flush(a):
    if not Cfg.stamp:
        return
    a("s_mov_b64 exec, -1\ns_waitcnt vmcnt(0) lgkmcnt(0)")
    st(a, 11)
    a("s_waitcnt lgkmcnt(0)")
    a(f"s_lshl_b32 s3, s2, 4\ns_add_u32 s3, s3, s36\ns_lshl_b32 s3, s3, 6\ns_add_u32 s3, s3, {DBG_OFF}")
    for i in range(12):
        a(f"v_mov_b32 v{4+i}, s{76+2*i}")
    a("v_mov_b32 v3, 0\ns_mov_b64 exec, 1")
    for i in range(0, 12, 4):
        a(f"buffer_store_dwordx4 v[{4+i}:{7+i}], v3, {WS}, s3 offen offset:{4*i}")


_uid = [0]


def uid():
    _uid[0] += 1
    return f"{N}_{_uid[0]}"


def get_epoch(a, t):
    l = uid()
    a.srd(32, 68, 256)
    a(f"v_mov_b32 v{t}, 0\ns_mov_b32 s62, 0")
    a(f"{l}:")
    a(f"buffer_load_dword v{t+1}, v{t}, s[32:35], 0 offen" + FS(), maybe=True)
    a(f"s_waitcnt vmcnt(0)\nv_readfirstlane_b32 s63, v{t+1}\ns_add_u32 s62, s62, 1\ns_cmp_lg_u32 s63, 0\n"
      f"s_cbranch_scc1 {l}d\ns_sleep 2\ns_cmp_lt_u32 s62, {SPIN}\ns_cbranch_scc1 {l}")
    a(f"{l}d:")


def poll(a, vaddr, t, ph=0):
    l = uid()
    one = opt("one", 15) >> ph & 1
    if one:
        a(f"s_cmp_lg_u32 s59, 0\ns_cbranch_scc1 {l}d")
    a("s_mov_b32 s62, 0")
    a(f"{l}:")
    a(f"buffer_load_dword v{t}, v{vaddr}, {WS}, 0 offen" + FS(), maybe=True)
    a(f"s_waitcnt vmcnt(0)\nv_cmp_ne_u32 vcc, s63, v{t}\ns_add_u32 s62, s62, 1\ns_nop 3\ns_cbranch_vccz {l}d\n"
      f"s_sleep {opt('slp', 1)}\ns_cmp_lt_u32 s62, {SPIN}\ns_cbranch_scc1 {l}")
    a(f"{l}d:")
    if one:
        a("s_waitcnt vmcnt(0)\ns_barrier")
    a.vm = []


def gbar(a, ph):
    if opt("one", 15) >> ph & 1:
        a("s_barrier")


def set_flag(a, soff, t, direct=False):
    l = uid()
    a(f"v_mov_b32 v{t}, {CNT}\nv_mov_b32 v{t+1}, 1\ns_mov_b64 exec, 1\ns_waitcnt vmcnt(0)")
    if not direct:
        a(f"ds_add_rtn_u32 v{t+1}, v{t}, v{t+1}", maybe=True)
        a(f"s_waitcnt lgkmcnt(0)\nv_readfirstlane_b32 s62, v{t+1}\ns_and_b32 s62, s62, 3\ns_cmp_lg_u32 s62, 3\n"
          f"s_cbranch_scc1 {l}")
    a(f"v_mov_b32 v{t}, 0\nv_mov_b32 v{t+1}, s63")
    a(f"buffer_store_dword v{t+1}, v{t}, {WS}, {soff} offen" + FS(), maybe=True)
    a(f"{l}:")
    a("s_mov_b64 exec, -1")


def rb_col(a, n):
    groups, nr = 16 // n, 32 // n
    a(f"s_lshr_b32 s37, s57, {lg2(groups)}\ns_lshl_b32 s37, s37, {lg2(nr)}\ns_and_b32 s39, s58, {nr-1}\n"
      "s_add_u32 s37, s37, s39")
    a(f"s_and_b32 s38, s57, {groups-1}\ns_lshl_b32 s38, s38, {lg2(n)}\ns_lshr_b32 s40, s58, {lg2(nr)}\n"
      "s_add_u32 s38, s38, s40")


def tile64(a):
    a("s_and_b32 s39, s58, 3\ns_lshl_b32 s37, s57, 2\ns_add_u32 s37, s37, s39\ns_lshr_b32 s38, s58, 2\n"
      "s_lshl_b32 s42, s38, 7")


def tile_kc(a):
    a("s_lshr_b32 s37, s57, 1\ns_lshl_b32 s37, s37, 2\ns_and_b32 s39, s58, 3\ns_add_u32 s37, s37, s39\n"
      "s_and_b32 s38, s57, 1\ns_mul_i32 s38, s38, 7\ns_lshr_b32 s40, s58, 2\ns_add_u32 s38, s38, s40\n"
      "s_lshl_b32 s45, s38, 8")


def touch_share(a, ptr, nbytes, t, per_xcd=False, nwg=256):
    lines = nbytes // 128
    per = -(-lines // ((32 if per_xcd else nwg) * 4))
    assert per <= 64
    a.srd(32, ptr, nbytes)
    a(f"s_lshl_b32 s56, {'s58' if per_xcd else 's2'}, 2\ns_add_u32 s56, s56, s59\ns_mul_i32 s56, s56, {per*128}")
    a(f"v_min_u32 v{t}, {per-1}, v1\nv_lshlrev_b32 v{t}, 7, v{t}")
    a(f"buffer_load_dword v{t+1}, v{t}, s[32:35], s56 offen", tag="pf")


P1_SLOT, P1_NS = 28672, 5
P1_MISC = P1_NS * P1_SLOT
P3_W, P3_X = 65536, 131072
P4_SLOT = 49152
P4_AUX = 3 * P4_SLOT
P5_NW, P5_NA = 13, 6
P5_A = P5_NW * 8192
P5_EP = 0


def loader(a):
    rb_col(a, opt("k1_ng", 8))
    a("s_mul_i32 s42, s38, 168")
    a("v_lshrrev_b32 v3, 3, v1\nv_and_b32 v4, 7, v1\nv_lshrrev_b32 v5, 1, v3")
    a("s_lshl_b32 s46, s59, 5\ns_lshl_b32 s47, s37, 7\ns_add_u32 s46, s46, s47\nv_add_u32 v6, s46, v3\n"
      "v_mul_u32_u24 v6, 896, v6")
    a("v_xor_b32 v7, v4, v5\nv_lshl_add_u32 v12, v7, 4, v6")
    a(f"v_xor_b32 v7, 4, v7\nv_lshl_add_u32 v13, v7, 4, v6\nv_add_u32 v13, {8*896-1024}, v13")
    a(f"v_add_u32 v14, {16*896-2048}, v12\nv_add_u32 v15, {16*896-2048}, v13")
    a(f"s_mul_i32 s41, s59, {16*2688}\ns_add_u32 s41, s41, s42\nv_mov_b32 v9, {OOB}")
    for i in range(3):
        a(f"v_add_u32 v3, {64*i}, v1\nv_mul_u32_u24 v4, 5462, v3\nv_lshrrev_b32 v4, 16, v4\nv_mul_u32_u24 v5, 12, v4\n"
          f"v_sub_u32 v5, v3, v5\nv_mul_u32_u24 v4, 2688, v4\nv_lshl_add_u32 v4, v5, 4, v4\nv_add_u32 v4, s41, v4\n"
          f"v_subrev_u32 v4, {1024*i}, v4\nv_cmp_eq_u32 vcc, 11, v5\nv_cndmask_b32 v{20+i}, v4, v9, vcc")
    a("s_lshl_b32 s49, s59, 12\ns_mul_i32 s44, s59, 3072\ns_add_u32 s44, s44, 16384")
    a("s_waitcnt lgkmcnt(0)")
    a.srd(16, 4, XB)
    a.srd(20, 6, D * 3 * D * 2)

    def chunk1(c):
        sl = (c % P1_NS) * P1_SLOT
        a(f"s_add_u32 m0, s49, {sl}\ns_movk_i32 s52, {c*128}")
        for i in range(4):
            a(f"buffer_load_dwordx4 v{12+i}, s[16:19], s52 offen offset:{1024*i} lds", tag=("c", c))
        a(f"s_add_u32 m0, s44, {sl}\ns_mov_b32 s51, {c*64*2688}")
        for i in range(3):
            a(f"buffer_load_dwordx4 v{20+i}, s[20:23], s51 offen offset:{1024*i} lds", tag=("c", c))
    chunk1(0)
    chunk1(1)
    a.srd(72, 70, WSB)
    for c in range(7):
        a.wait(vm=[("c", c)])
        a("s_barrier")
        if c + 2 < 7:
            chunk1(c + 2)
    st(a, 1)
    a(f"s_cmp_lg_u32 s59, 0\ns_cbranch_scc1 {N}_lne")
    get_epoch(a, 24)
    a(f"{N}_lne:")
    if opt("pfo", 1): touch_share(a, 8, D*D*2, 24, per_xcd=True)
    rb_col(a, opt("k2_nh", 2))
    a("v_mov_b32 v3, v1\nv_cmp_lt_u32 vcc, 6, v3\nv_cndmask_b32 v3, v3, 0, vcc\nv_add_u32 v3, 2, v3\n"
      "v_mul_u32_u24 v4, 43, v3\nv_lshrrev_b32 v4, 7, v4\nv_mul_u32_u24 v5, 3, v4\nv_sub_u32 v5, v3, v5")
    a("v_cmp_eq_u32 vcc, 0, v4\nv_cndmask_b32 v5, v5, 0, vcc\nv_sub_u32 v5, s37, v5\nv_mov_b32 v6, s37\n"
      "v_cmp_gt_i32 vcc, 0, v5\nv_cndmask_b32 v5, v5, v6, vcc")
    a("v_lshlrev_b32 v4, 4, v4\nv_add_u32 v4, s38, v4\nv_mul_u32_u24 v4, 43, v4\nv_lshrrev_b32 v4, 7, v4")
    a(f"v_lshl_add_u32 v30, v5, 4, v4\nv_lshlrev_b32 v30, {FSH()}, v30\nv_add_u32 v30, {FL_OFF + FREG}, v30")
    a(f"s_mul_i32 s60, s38, {HB}\ns_lshl_b32 s61, s37, 13\ns_add_u32 s60, s60, s61\ns_add_u32 s60, s60, {KV_OFF}\n"
      "v_lshlrev_b32 v8, 4, v1\nv_lshrrev_b32 v2, 5, v1\nv_lshlrev_b32 v3, 6, v2\nv_xor_b32 v6, v8, v3\n"
      "v_xor_b32 v7, 128, v6")
    a("s_lshl_b32 s43, s59, 11\ns_add_u32 s61, s60, s43\ns_add_u32 s61, s61, 16384")
    a(f"s_mul_i32 s44, s59, 6144\ns_add_u32 s60, s60, s44\ns_add_u32 s60, s60, {IMGB}")
    a("s_lshl_b32 s46, s37, 2\ns_mul_i32 s47, s59, 3\ns_add_u32 s46, s46, s47")
    for p in range(3):
        a(f"s_add_u32 s47, s46, {p}\ns_add_u32 s{48+p}, s60, {p*2048}\ns_cmp_ge_u32 s47, 8\ns_cselect_b32 s{48+p}, s{48+p}, {OOB}")
    a("s_barrier")
    if opt("eb", 1): a("s_barrier")
    poll(a, 30, 31, 0)
    st(a, 2)
    for p in range(3):
        a(f"s_add_u32 m0, s44, {p*2048}")
        a(f"buffer_load_dwordx4 v8, {WS}, s{48+p} offen sc1 lds", tag="k")
        a(f"buffer_load_dwordx4 v8, {WS}, s{48+p} offen offset:1024 sc1 lds", tag="k")
    a("s_add_u32 m0, s43, 49152")
    a(f"buffer_load_dwordx4 v8, {WS}, s61 offen sc1 lds", tag="k")
    a(f"buffer_load_dwordx4 v8, {WS}, s61 offen offset:1024 sc1 lds", tag="k")
    for p in range(3):
        a(f"s_add_u32 m0, s44, {24576 + p*2048}\ns_add_u32 s52, s{48+p}, {IMGB}")
        a(f"buffer_load_dwordx4 v6, {WS}, s52 offen sc1 lds", tag="v")
        a(f"buffer_load_dwordx4 v7, {WS}, s52 offen offset:1024 sc1 lds", tag="v")
    tile64(a)
    a("s_lshr_b32 s40, s59, 1\ns_and_b32 s41, s59, 1")
    a("v_lshrrev_b32 v3, 3, v1\nv_and_b32 v4, 7, v1\nv_bfe_u32 v5, v1, 4, 1\nv_lshlrev_b32 v5, 2, v5\nv_xor_b32 v4, v4, v5\n"
      "v_mul_u32_u24 v16, 896, v3\nv_lshl_add_u32 v16, v4, 4, v16\nv_add_u32 v16, s42, v16")
    a(f"v_add_u32 v17, {8*896 - 1024}, v16")
    a.wait(vm="k")
    a("s_barrier")
    a.wait(vm="v")
    a("s_barrier")
    st(a, 3)
    if opt("pfgu", 1) == 2:
        touch_share(a, 12, WFB, 24)
        touch_share(a, 14, WFB, 26)
    a(f"s_cmp_ge_u32 s2, 224\ns_cbranch_scc1 {N}_l2skip")
    a.srd(20, 8, D * 896)
    a("s_mul_i32 s49, s40, 28\ns_lshl_b32 s50, s41, 4\ns_add_u32 s49, s49, s50\ns_mul_i32 s49, s49, 896")
    for c in range(8):
        a(f"s_add_u32 m0, s43, {P3_W + c*8192}")
        a("buffer_load_dwordx4 v16, s[20:23], s49 offen lds", maybe=True)
        a("buffer_load_dwordx4 v17, s[20:23], s49 offen offset:1024 lds", maybe=True)
        a(f"s_add_u32 s49, s49, {56*896}")
    a("s_lshl_b32 s46, s37, 6\ns_lshl_b32 s47, s41, 5\ns_add_u32 s46, s46, s47\ns_mul_i32 s46, s46, 896\n"
      "s_lshl_b32 s47, s40, 6\ns_add_u32 s46, s46, s47\ns_add_u32 s46, s46, s42")
    a(f"v_lshrrev_b32 v3, 2, v1\nv_mul_u32_u24 v3, 896, v3\nv_and_b32 v4, 3, v1\nv_lshl_add_u32 v3, v4, 4, v3\n"
      f"v_add_u32 v4, {16*896 - 1024}, v3\ns_add_u32 m0, s43, {P3_X}")
    a("buffer_load_dwordx4 v3, s[16:19], s46 offen lds", maybe=True)
    a("buffer_load_dwordx4 v4, s[16:19], s46 offen offset:1024 lds", maybe=True)
    a(f"{N}_l2skip:")
    if opt("pfgu", 1) == 1:
        touch_share(a, 12, WFB, 24)
        touch_share(a, 14, WFB, 26)
        a("s_waitcnt vmcnt(2)")
    else:
        a("s_waitcnt vmcnt(0)")
    a("s_barrier")
    a(f"s_cmp_ge_u32 s2, 224\ns_cbranch_scc1 {N}_colsum")
    a(f"s_lshr_b32 s46, s37, 1\ns_lshl_b32 s46, s46, {4 + FSH()}\ns_add_u32 s46, s46, {FL_OFF + 2*FREG}\nv_min_u32 v30, 15, v1\n"
      f"v_lshlrev_b32 v30, {FSH()}, v30\nv_add_u32 v30, s46, v30")
    a(f"s_lshl_b32 s48, s37, 1\ns_add_u32 s48, s48, s40\ns_lshl_b32 s48, s48, 15\ns_lshl_b32 s44, s41, 11\n"
      f"s_add_u32 s48, s48, s44\ns_add_u32 s48, s48, {O_OFF}")
    poll(a, 30, 31, 1)
    st(a, 4)
    for c in range(8):
        a(f"s_add_u32 m0, s43, {c*8192}")
        a(f"buffer_load_dwordx4 v8, {WS}, s48 offen sc1 lds", tag=("o", c >> 1))
        a(f"buffer_load_dwordx4 v8, {WS}, s48 offen offset:1024 sc1 lds", tag=("o", c >> 1))
        a("s_add_u32 s48, s48, 4096")
        if c == 5:
            a.wait(vm=[("o", 0)])
            a("s_barrier")
    tile_kc(a)
    a("s_lshr_b32 s40, s59, 1")
    a("v_lshrrev_b32 v3, 4, v1\ns_lshl_b32 s44, s40, 2\nv_or_b32 v4, s44, v3\nv_bfe_u32 v5, v1, 1, 3\nv_xor_b32 v4, v4, v5")
    a(f"s_lshl_b32 s44, s41, 2\nv_add_u32 v3, s44, v3\nv_mul_u32_u24 v14, {DF*2}, v3")
    a("v_lshl_add_u32 v14, v4, 5, v14\nv_and_b32 v5, 1, v1\nv_lshl_add_u32 v14, v5, 4, v14\nv_add_u32 v14, s45, v14")
    a(f"v_add_u32 v15, {8*DF*2 - 2048}, v14")
    for g in range(1, 4):
        a.wait(vm=[("o", g)])
        a("s_barrier")
    a("s_lshl_b32 s47, s59, 12\ns_lshl_b32 s48, s40, 14\ns_lshl_b32 s49, s41, 10\ns_add_u32 s48, s48, s49\n"
      "s_add_u32 s48, s48, 16384")
    a("s_cmp_eq_u32 s40, 0\ns_cselect_b32 s20, s12, s14\ns_cselect_b32 s21, s13, s15")
    a(f"s_mov_b32 s22, {WFB}\ns_mov_b32 s23, 0x20000")
    a(f"s_lshl_b32 s50, s37, 2\ns_add_u32 s50, s50, s59\ns_mul_i32 s50, s50, 28672\ns_add_u32 s50, s50, {H_OFF}")
    a(f"s_lshl_b32 s46, s37, {4 + FSH()}\ns_add_u32 s46, s46, {FL_OFF + 3*FREG}\nv_lshlrev_b32 v30, {FSH()}, v1\nv_add_u32 v30, s46, v30")
    a(f"s_lshl_b32 s46, s38, 1\nv_bfe_u32 v3, v1, 1, 1\nv_mul_u32_u24 v3, 28, v3\nv_and_b32 v4, 1, v1\nv_add3_u32 v3, v3, v4, s46\n"
      f"v_lshlrev_b32 v3, {FSH()}, v3\nv_add_u32 v3, {FL_OFF + 5*FREG}, v3\nv_cmp_lt_u32 vcc, 13, v1\n"
      "v_cndmask_b32 v30, v30, v3, vcc")

    def w4(c, pace=False):
        sl = (c % 3) * P4_SLOT
        for i in range(4):
            if pace and opt("pace", 3):
                a(f"s_waitcnt vmcnt({opt('pace', 3) - 1})")
            a(f"s_add_u32 m0, s48, {sl + i*4096}\ns_mov_b32 s53, {(c*64 + 16*i)*DF*2}")
            a("buffer_load_dwordx4 v14, s[20:23], s53 offen lds", tag=("c4", c))
            a("buffer_load_dwordx4 v15, s[20:23], s53 offen offset:2048 lds", tag=("c4", c))

    def h4(c):
        a(f"s_add_u32 m0, s47, {(c % 3) * P4_SLOT}\ns_add_u32 s52, s50, {c*4096}")
        for i in range(4):
            a(f"buffer_load_dwordx4 v8, {WS}, s52 offen offset:{1024*i} sc1 lds", tag=("c4", c))

    def aux4():
        a(f"v_lshrrev_b32 v3, 5, v1\nv_mul_u32_u24 v3, {DF*4 - 512}, v3\nv_add_u32 v18, v8, v3")
        a(f"s_lshl_b32 s54, s37, 11\ns_lshl_b32 s55, s41, 10\ns_add_u32 s54, s54, s55\ns_mul_i32 s55, s40, {S*16}\n"
          f"s_add_u32 s54, s54, s55\ns_add_u32 s54, s54, {ST_OFF}\ns_lshl_b32 s56, s59, 10")
        for j in range(3):
            a(f"s_add_u32 m0, s56, {P4_AUX + j*4096}\ns_add_u32 s55, s54, {2*j*S*16}")
            a(f"buffer_load_dwordx4 v8, {WS}, s55 offen sc1 lds", tag="aux")
        a(f"s_add_u32 m0, s56, {P4_AUX + 3*4096}\ns_add_u32 s55, s54, {6*S*16}\ns_lshl_b32 s61, s38, 9\n"
          f"s_add_u32 s61, s61, {CS_OFF}\ns_cmp_eq_u32 s59, 3\ns_cselect_b32 s61, {OOB}, s61\n"
          "s_cmp_lt_u32 s59, 2\ns_cselect_b32 s55, s55, s61\ns_cselect_b64 vcc, -1, 0\nv_cndmask_b32 v18, v18, v8, vcc")
        a(f"buffer_load_dwordx4 v18, {WS}, s55 offen sc1 lds", tag="aux")
    a("s_barrier")
    n1 = opt("pre4a", 0)
    for c in range(n1):
        w4(c, True)
    a("s_barrier")
    for c in range(n1, opt("pre4", 3)):
        w4(c)
    poll(a, 30, 31, 2)
    st(a, 5)
    for c in range(3):
        h4(c)
        if c >= opt("pre4", 3):
            w4(c)
    aux4()
    for c in range(7):
        a.wait(vm=[("c4", c)])
        a("s_barrier")
        if 1 <= c and c + 2 < 7:
            h4(c + 2)
            w4(c + 2)
    st(a, 6)
    touch_share(a, 64, WFB, 24, nwg=224)
    tile64(a)
    a.srd(20, 64, WFB)
    a(f"s_lshr_b32 s46, s37, 1\ns_lshl_b32 s46, s46, {4 + FSH()}\ns_add_u32 s46, s46, {FL_OFF + 4*FREG}\nv_min_u32 v30, 13, v1\n"
      f"v_lshlrev_b32 v30, {FSH()}, v30\nv_add_u32 v30, s46, v30")
    a(f"s_lshl_b32 s48, s37, 1\ns_add_u32 s48, s48, s40\ns_mul_i32 s48, s48, {112*1024}\ns_lshl_b32 s44, s41, 11\n"
      f"s_add_u32 s48, s48, s44\ns_add_u32 s48, s48, {HH_OFF}\ns_mul_i32 s49, s59, {16*896}")

    def w5(c):
        a(f"s_add_u32 m0, s43, {(c % P5_NW)*8192}\ns_add_u32 s53, s49, {c*64*896}")
        a("buffer_load_dwordx4 v16, s[20:23], s53 offen lds", tag=("c5", c))
        a("buffer_load_dwordx4 v17, s[20:23], s53 offen offset:1024 lds", tag=("c5", c))

    def a5(c):
        a(f"s_add_u32 m0, s43, {P5_A + (c % P5_NA)*8192}\ns_add_u32 s52, s48, {c*4096}")
        a(f"buffer_load_dwordx4 v8, {WS}, s52 offen sc1 lds", tag=("c5", c))
        a(f"buffer_load_dwordx4 v8, {WS}, s52 offen offset:1024 sc1 lds", tag=("c5", c))
    a("s_barrier")
    for c in range(P5_NW):
        if opt("pace", 3):
            a(f"s_waitcnt vmcnt({opt('pace', 3) - 1})")
        w5(c)
    if opt("eb", 1): a("s_barrier")
    poll(a, 30, 31, 3)
    st(a, 7)
    LA = P5_NA - 2
    for c in range(LA):
        a5(c)
    nw = P5_NW
    wsched = {}
    for k in range(P5_NW, 28):
        b = max(k - P5_NW + 2, round((k - P5_NW) * 1.45) + 2)
        wsched.setdefault(b, []).append(k)
        assert b <= k - LA
    for c in range(28):
        a.wait(vm=[("c5", c)])
        a("s_barrier")
        for k in wsched.get(c, []):
            w5(k)
        if c + LA < 28:
            a5(c + LA)
    st(a, 8)
    st_flush(a)
    a("s_endpgm")


def cons_p1(a):
    rb_col(a, opt("k1_ng", 8))
    a(f"s_cmp_ge_u32 s36, 2\ns_cbranch_scc1 {N}_nt")
    a("s_cmp_eq_u32 s36, 0\ns_cselect_b32 s54, 56, 37\ns_mul_i32 s53, s2, s54\ns_lshl_b32 s53, s53, 7")
    a(f"v_lshlrev_b32 v3, 7, v1\nv_mov_b32 v4, {OOB}\nv_cmp_gt_u32 vcc, s54, v1\nv_cndmask_b32 v3, v4, v3, vcc")
    a("s_waitcnt lgkmcnt(0)")
    a("s_cmp_eq_u32 s36, 0\ns_cselect_b32 s16, s4, s6\ns_cselect_b32 s17, s5, s7")
    a(f"s_mov_b32 s18, {XB}\ns_cselect_b32 s18, s18, {D*3*D*2}\ns_mov_b32 s19, 0x20000")
    a("buffer_load_dword v2, v3, s[16:19], s53 offen", maybe=True)
    a(f"{N}_nt:")
    a(f"s_cmp_lg_u32 s36, 3\ns_cbranch_scc1 {N}_nc")
    a("s_getpc_b64 s[32:33]")
    a(f"{N}_pc:")
    a(f"s_sub_u32 s32, s32, {N}_pc-{KNAME}\ns_subb_u32 s33, s33, 0\ns_and_b32 s33, s33, 0xffff")
    a(f"s_mov_b32 s34, code_end-{KNAME}\ns_mov_b32 s35, 0x20000")
    a("s_and_b32 s53, s58, 3\ns_lshl_b32 s53, s53, 13\nv_lshlrev_b32 v3, 7, v1")
    a("buffer_load_dword v2, v3, s[32:35], s53 offen", maybe=True)
    a(f"{N}_nc:")
    a("s_waitcnt lgkmcnt(0)")
    a.srd(72, 70, WSB)
    if opt("fw", 1):
        a(f"s_cmp_lg_u32 s36, 2\ns_cbranch_scc1 {N}_nfw\ns_cmp_ge_u32 s2, {max(8, 256 >> (7 - FSH()))}\ns_cbranch_scc1 {N}_nfw")
        a(f"v_min_u32 v3, 4, v1\nv_lshlrev_b32 v3, 16, v3\ns_lshl_b32 s53, s2, 7\ns_add_u32 s53, s53, {FL_OFF + FREG}")
        a(f"buffer_load_dword v2, v3, {WS}, s53 offen sc1", maybe=True)
        a(f"{N}_nfw:")
    a(f"s_lshl_b32 s53, s2, 2\ns_add_u32 s53, s53, s36\ns_cmp_lg_u32 s53, 2\ns_cbranch_scc1 {N}_ne")
    a(f"v_mov_b32 v3, 0\ns_mov_b32 s53, {FL_OFF}\ns_mov_b64 exec, 1")
    a(f"buffer_load_dword v4, v3, {WS}, s53 offen" + FS(), maybe=True)
    a.srd(32, 68, 256)
    a("s_waitcnt vmcnt(0)\nv_add_u32 v4, 1, v4\nv_max_u32 v4, 1, v4")
    a("buffer_store_dword v4, v3, s[32:35], 0 offen" + FS(), maybe=True)
    a(f"buffer_store_dword v4, v3, {WS}, s53 offen" + FS(), maybe=True)
    a("s_mov_b64 exec, -1")
    a(f"{N}_ne:")
    a(f"v_mov_b32 v3, {CNT}\nv_mov_b32 v4, 0\nds_write_b32 v3, v4", maybe=True)
    FR = 32
    AC, DA, SA, CA = 128, 176, 184, 192
    ONES = 24
    NS, SLOT, MISC = P1_NS, P1_SLOT, P1_MISC
    a("v_and_b32 v3, 31, v1\nv_lshrrev_b32 v4, 5, v1\ns_lshl_b32 s49, s36, 12")
    a("v_lshlrev_b32 v20, 7, v3\nv_add_u32 v20, s49, v20\nv_bfe_u32 v21, v3, 1, 3\nv_xor_b32 v21, v21, v4")
    for s in range(4):
        a(f"v_xor_b32 v22, {2*s}, v21\nv_lshl_add_u32 v{5+s}, v22, 4, v20")
    a("v_and_b32 v13, 15, v1\nv_lshrrev_b32 v14, 4, v1")
    a("v_bfe_u32 v20, v1, 2, 2\nv_lshl_add_u32 v21, v4, 3, v20\nv_mul_u32_u24 v21, 192, v21\nv_and_b32 v22, 3, v1\n"
      "v_lshlrev_b32 v22, 3, v22\nv_add_u32 v22, 16384, v22\nv_add_u32 v21, v21, v22\nv_and_b32 v23, 1, v14\n"
      "v_lshl_add_u32 v11, v23, 5, v21")
    a("v_lshl_add_u32 v21, v14, 3, v20\nv_mul_u32_u24 v21, 192, v21\nv_add_u32 v21, v21, v22\ns_min_u32 s53, s36, 2\n"
      "s_mul_i32 s53, s53, 56\nv_add_u32 v12, s53, v21")
    for i in range(4):
        a(f"v_mov_b32 v{ONES+i}, {ONES_BF16}")
    for r in range(AC, CA + 8):
        a(f"v_mov_b32 v{r}, 0")
    a("v_and_b32 v20, 3, v1\nv_cmp_eq_u32 s[24:25], 1, v20\nv_cmp_eq_u32 s[26:27], 2, v20\nv_cmp_eq_u32 s[28:29], 3, v20")
    a("v_cmp_lt_u32 s[30:31], 31, v1")
    a(f"s_lshl_b32 s54, s36, 7\ns_add_u32 s54, s54, {MISC}\nv_lshlrev_b32 v18, 2, v13\nv_add_u32 v18, s54, v18")
    a(f"v_lshlrev_b32 v19, 4, v4\nv_add_u32 v19, {MISC}, v19\nv_lshlrev_b32 v17, 4, v1")
    a(f"s_mul_i32 s55, s38, 3\ns_mul_i32 s60, s55, {HB}\ns_lshl_b32 s61, s37, 2\ns_add_u32 s61, s61, s36\n"
      f"s_add_u32 s61, s61, 8\ns_lshl_b32 s61, s61, 11\ns_add_u32 s60, s60, s61\ns_add_u32 s60, s60, {KV_OFF}")
    csc = DH ** -0.5 * math.log2(math.e)
    for i in range(3):
        a(f"s_add_u32 s47, s55, {i}\ns_cmp_lt_u32 s47, 16\ns_cselect_b32 s{40+i}, {fx(csc)}, 1.0\n"
          f"s_lshr_b32 s47, s47, 4\ns_cmp_eq_u32 s47, 1\ns_cselect_b32 s{43+i}, 0, 0x3f80")
    a(f"s_lshl_b32 s61, s37, 4\ns_add_u32 s61, s61, s38\n"
      f"s_lshl_b32 s61, s61, {FSH()}\ns_add_u32 s61, s61, {FL_OFF + 1*FREG}")
    x32 = lambda h, s: FR + 40*h + 4*s
    w32 = lambda h, s, n: FR + 40*h + 8 + 12*s + 4*n
    csf = lambda h, t: FR + 40*h + 32 + 4*t

    def tr(r, ad, off, step, tag):
        return [(f"ds_read_b64_tr_b16 v[{r}:{r+1}], v{ad} offset:{off}", tag),
                (f"ds_read_b64_tr_b16 v[{r+2}:{r+3}], v{ad} offset:{off + step}", tag)]

    def reads(h):
        out = []
        for s in range(2):
            out.append((f"ds_read_b128 v[{x32(h,s)}:{x32(h,s)+3}], v{5+2*h+s}", ("f", h, s, 0)))
            for n in range(3):
                out += tr(w32(h, s, n), 11, (32*h + 16*s)*192 + 56*n, 4*192, ("f", h, s, n))
            out += tr(csf(h, s), 12, 32*h*192 + 32*s, 4*192, ("f", h, s, "c"))
        return out
    mm = lambda d, A, B: f"v_mfma_f32_16x16x32_bf16 v[{d}:{d+3}], v[{A}:{A+3}], v[{B}:{B+3}], v[{d}:{d+3}]"
    mm4 = lambda d, A, B: f"v_mfma_f32_4x4x4_16b_bf16 v[{d}:{d+3}], v[{A}:{A+1}], v[{B}:{B+1}], v[{d}:{d+3}]"
    mm32 = lambda d, A, B: f"v_mfma_f32_32x32x16_bf16 v[{d}:{d+15}], v[{A}:{A+3}], v[{B}:{B+3}], v[{d}:{d+15}]"

    def half(h, rds, extra={}):
        mms = []
        for s in range(2):
            for n in range(3):
                mms.append((mm32(AC + 16*n, w32(h, s, n), x32(h, s)), ("f", h, s, n), 3))
        for s in range(2):
            x = x32(h, s)
            mms += [(mm4(DA, x, x), None, 0), (mm4(SA, ONES, x), None, 0), (mm4(DA + 4, x + 2, x + 2), None, 0),
                    (mm4(SA + 4, ONES, x + 2), None, 0)]
        for s in range(2):
            mms.append((mm(CA + 4*s, ONES, csf(h, s)), ("f", h, s, "c") if s else None, 0))
        rds = list(rds)
        for i, (m, dep, k) in enumerate(mms):
            if dep:
                a.wait(lg=[dep])
            a(m)
            for _ in range(k):
                if rds:
                    t, tag = rds.pop(0)
                    a(t, tag=tag)
            if i in extra:
                a(extra[i])
        assert not rds
    a("s_barrier")
    for t, tag in reads(0):
        a(t, tag=tag)
    a(f"s_mov_b32 s47, 0\ns_mov_b32 s46, {SLOT}")
    a(f"{N}_p1loop:")
    adv = lambda rs: "\n".join(f"v_add_u32 v{r}, s48, v{r}" for r in rs)
    half(0, reads(1),
         {0: f"s_add_u32 s47, s47, 1\ns_cmp_eq_u32 s47, {NS}\ns_cselect_b32 s48, {(-(NS-1)*SLOT) & 0xffffffff}, s46",
          1: adv([5]), 2: adv([6]), 4: adv([7]), 5: adv([8]), 14: adv([11]), 15: adv([12])})
    a(f"s_cmp_eq_u32 s47, 7\ns_cbranch_scc1 {N}_p1last")
    saved = list(a.lg)
    a("s_barrier")
    half(1, reads(0))
    a(f"s_branch {N}_p1loop")
    a(f"{N}_p1last:")
    a.lg = saved
    a.srd(32, 68, 256)
    a("v_mov_b32 v200, 0")
    a("buffer_load_dword v201, v200, s[32:35], 0 offen" + FS(), tag="ep")
    half(1, [])
    st(a, 1)
    ST, T0 = 28, 32
    a(f"ds_write_b32 v18, v{CA}\nds_write_b32 v18, v{CA+4} offset:64")
    for i in range(4):
        a(f"v_add_f32 v{DA+i}, v{DA+i}, v{DA+4+i}")
    a(f"v_add_f32 v{ST}, v{SA}, v{SA+4}")
    a(f"v_cndmask_b32 v{DA}, v{DA}, v{DA+1}, s[24:25]\nv_cndmask_b32 v{DA}, v{DA}, v{DA+2}, s[26:27]\n"
      f"v_cndmask_b32 v{ST+1}, v{DA}, v{DA+3}, s[28:29]")
    a(f"v_mov_b32 v{T0}, v{ST}\nv_mov_b32 v{T0+1}, v{ST+1}")
    a(f"v_permlane32_swap_b32 v{ST}, v{T0}\nv_permlane32_swap_b32 v{ST+1}, v{T0+1}")
    a(f"v_add_f32 v{ST}, v{ST}, v{T0}\nv_add_f32 v{ST+1}, v{ST+1}, v{T0+1}")
    a("s_waitcnt lgkmcnt(0)\ns_barrier")
    CS = 48
    for n in range(3):
        for g in range(4):
            a(f"ds_read_b128 v[{CS+16*n+4*g}:{CS+16*n+4*g+3}], v19 offset:{128*n + 32*g}", tag=("cs", n))
    a(f"v_mul_f32 v{ST}, {fx(-1.0/D)}, v{ST}\nv_mul_f32 v{ST+1}, {fx(1.0/D)}, v{ST+1}")
    a(f"v_fma_f32 v{ST+1}, -v{ST}, v{ST}, v{ST+1}\nv_max_f32 v{ST+1}, 0, v{ST+1}\nv_add_f32 v{ST+1}, {fx(1e-5)}, v{ST+1}")
    a(f"v_rsq_f32 v{T0}, v{ST+1}")
    for n in range(3):
        a.wait(lg=[("cs", n)])
        r0, P = AC + 16*n, 96 + 8*n
        for i in range(8):
            r = r0 + 2*i
            a(f"v_pk_fma_f32 v[{r}:{r+1}], v[{CS+16*n+2*i}:{CS+16*n+2*i+1}], v[{ST}:{ST+1}], v[{r}:{r+1}] op_sel_hi:[1,0,1]")
        a(f"v_mul_f32 v{ST+1}, s{40+n}, v{T0}\nv_mov_b32 v{T0+1}, s{43+n}")
        if n:
            a(f"s_add_u32 s60, s60, {HB}")
        for m in range(2):
            for i in range(4):
                r = r0 + 8*m + 2*i
                a(f"v_pk_mul_f32 v[{r}:{r+1}], v[{r}:{r+1}], v[{ST}:{ST+1}] op_sel:[0,1] op_sel_hi:[1,1]")
            for i in range(4):
                a(f"v_cvt_pk_bf16_f32 v{P+4*m+i}, v{r0+8*m+2*i}, v{r0+8*m+2*i+1}")
            if m:
                a(f"v_cndmask_b32 v{P+6}, v{P+6}, v{T0+1}, s[30:31]\nv_cndmask_b32 v{P+7}, v{P+7}, 0, s[30:31]")
            a(f"buffer_store_dwordx4 v[{P+4*m}:{P+4*m+3}], v17, {WS}, s60 offen offset:{1024*m} sc1")
    a.wait(vm="ep")
    a(f"v_readfirstlane_b32 s63, v201\ns_cmp_lg_u32 s63, 0\ns_cbranch_scc1 {N}_epok")
    get_epoch(a, 200)
    a(f"{N}_epok:")
    set_flag(a, "s61", 200)
    st(a, 2)
    if opt("eb", 1): a("s_barrier")


def cons_p2(a):
    a.vm, a.lg = [], []
    rb_col(a, opt("k2_nh", 2))
    QF = 12
    KF, SS, PP, OA, BU, BD, NM, VF, M = 20, 92, 140, 156, 172, 188, 204, 220, 4
    NV = 4
    a("v_lshlrev_b32 v8, 4, v1\nv_lshrrev_b32 v2, 5, v1")
    a(f"v_and_b32 v3, 31, v1\nv_mov_b32 v10, {NEG}\nv_lshlrev_b32 v11, 2, v2\nv_sub_u32 v11, v3, v11")
    for r in range(16):
        a(f"v_cmp_gt_i32 vcc, {8*(r>>2) + (r&3)}, v11\nv_cndmask_b32 v{BU+r}, v10, 0, vcc\nv_cndmask_b32 v{BD+r}, 0, v10, vcc")
    a("s_lshl_b32 s47, s36, 11\nv_add_u32 v9, s47, v8")
    a("v_bfe_u32 v4, v1, 4, 1\nv_and_b32 v5, 1, v1\nv_lshl_add_u32 v10, v4, 1, v5\nv_xor_b32 v10, v10, v2\n"
      "v_lshl_add_u32 v10, v5, 3, v10\nv_lshlrev_b32 v10, 6, v10\nv_lshl_add_u32 v10, v4, 10, v10\n"
      "v_bfe_u32 v4, v1, 2, 2\nv_lshl_add_u32 v10, v4, 4, v10\nv_bfe_u32 v4, v1, 1, 1\nv_lshl_add_u32 v10, v4, 3, v10\n"
      "s_add_u32 s47, s47, 24576\nv_add_u32 v6, s47, v10\nv_xor_b32 v7, 128, v6")
    a("s_lshl_b32 s46, s37, 2\ns_add_u32 s46, s46, s36\ns_lshl_b32 s42, s46, 4\ns_add_u32 s42, s42, s38\n"
      f"s_lshl_b32 s42, s42, 11\ns_add_u32 s42, s42, {O_OFF}\nv_mov_b32 v11, {NEGB}")
    a(f"s_lshl_b32 s61, s37, 4\ns_add_u32 s61, s61, s38\n"
      f"s_lshl_b32 s61, s61, {FSH()}\ns_add_u32 s61, s61, {FL_OFF + 2*FREG}")
    gbar(a, 0)
    a("s_barrier")
    st(a, 3)
    a(f"ds_read_b128 v[{QF}:{QF+3}], v9 offset:49152\nds_read_b128 v[{QF+4}:{QF+7}], v9 offset:50176", tag="q")
    krd = [(f"ds_read_b128 v[{KF+4*i}:{KF+4*i+3}], v9 offset:{i*1024}", ("kf", i)) for i in range(18)]
    a(f"s_cmp_ge_u32 s46, 8\ns_cbranch_scc1 {N}_p2v")
    a(f"v_cndmask_b32 v10, 0, v11, s[30:31]\ns_sub_u32 s46, 8, s46\nv_add_u32 v4, 1032, v9")
    a(f"{N}_p2i:")
    a("ds_write_b32 v4, v10", maybe=True)
    a(f"v_add_u32 v4, 2048, v4\ns_sub_u32 s46, s46, 1\ns_cmp_lg_u32 s46, 0\ns_cbranch_scc1 {N}_p2i")
    a(f"{N}_p2v:")
    for _ in range(6):
        t, tag = krd.pop(0)
        a(t, tag=tag)
    sreg = lambda j: SS + 16*(j % 3)

    def smm(j, cu, cd, cn):
        cc = cu if j == 0 else (cd if j == 8 else cn)
        r = sreg(j)
        return [f"v_mfma_f32_32x32x16_bf16 v[{r}:{r+15}], v[{KF+8*j}:{KF+8*j+3}], v[{QF}:{QF+3}], {cc}",
                f"v_mfma_f32_32x32x16_bf16 v[{r}:{r+15}], v[{KF+8*j+4}:{KF+8*j+7}], v[{QF+4}:{QF+7}], v[{r}:{r+15}]"]

    def mx(j):
        r = sreg(j)
        out = []
        for i in range(8):
            m = M + (i & 1)
            if j == 0 and i < 2:
                out.append(f"v_max_f32 v{m}, v{r+2*i}, v{r+2*i+1}")
            else:
                out.append(f"v_max3_f32 v{m}, v{m}, v{r+2*i}, v{r+2*i+1}")
        return out

    def vrd(j):
        for c in range(2):
            for u in range(2):
                r = VF + 8*(j % NV) + 4*c + 2*u
                a(f"ds_read_b64_tr_b16 v[{r}:{r+1}], v{6+u} offset:{j*2048 + c*256}", tag=("vf", j))
    R = lambda x: f"v[{x}:{x+15}]"
    for j in range(11):
        mms = smm(j, R(BU), R(BD), "0") if j < 9 else []
        va = mx(j - 2) if j >= 2 else []
        if mms:
            a.wait(lg=[("kf", 2*j + 1)])
        for i in range(2):
            if mms:
                a(mms[i])
            if krd:
                t, tag = krd.pop(0)
                a(t, tag=tag)
            for v in va[4*i:4*i+4]:
                a(v)
        if j == 8:
            a("s_barrier")
            for jj in range(NV - 1):
                vrd(jj)
    a(f"v_max_f32 v{M}, v{M}, v{M+1}\nv_mov_b32 v{M+1}, v{M}\nv_permlane32_swap_b32 v{M}, v{M+1}\n"
      f"v_max_f32 v{M}, v{M}, v{M+1}")
    for i in range(8):
        a(f"v_pk_add_f32 v[{BU+2*i}:{BU+2*i+1}], v[{BU+2*i}:{BU+2*i+1}], v[{M}:{M+1}] op_sel_hi:[1,0] neg_lo:[0,1] neg_hi:[0,1]")
    for m in smm(0, R(BU), R(BD), R(NM)):
        a(m)
    for r in range(16):
        a(f"v_sub_f32 v{NM+r}, 0, v{M}")
    for m in smm(1, R(BU), R(BD), R(NM)):
        a(m)
    late = [f"v_sub_f32 v{BD+r}, v{BD+r}, v{M}" for r in range(16)]

    def pv(j):
        pr = PP + 8*(j & 1)
        vr_ = VF + 8*(j % NV)
        cc = "0" if j == 0 else R(OA)
        return [f"v_mfma_f32_32x32x16_bf16 {R(OA)}, v[{vr_}:{vr_+3}], v[{pr}:{pr+3}], {cc}",
                f"v_mfma_f32_32x32x16_bf16 {R(OA)}, v[{vr_+4}:{vr_+7}], v[{pr+4}:{pr+7}], {R(OA)}"]
    for j in range(9):
        r, pr = sreg(j), PP + 8*(j & 1)
        va = [f"v_exp_f32 v{r+i}, v{r+i}" for i in range(16)]
        va += [f"v_cvt_pk_bf16_f32 v{pr+i}, v{r+2*i}, v{r+2*i+1}" for i in range(8)]
        if j < 4:
            va += late[4*j:4*j+4]
        mf = (pv(j - 1) if j else []) + (smm(j + 2, R(BU), R(BD), R(NM)) if j + 2 < 9 else [])
        if j:
            a.wait(lg=[("vf", j - 1)])
        k = 0
        for idx, v in enumerate(va):
            a(v)
            if idx % 4 == 1 and k < len(mf):
                a(mf[k]); k += 1
            if idx == 10 and j >= 1 and j + NV - 2 < 9:
                vrd(j + NV - 2)
        assert k == len(mf)
    a.wait(lg=[("vf", 8)])
    for m in pv(8):
        a(m)
    a(f"v_mov_b32 v{M}, v{OA+12}\nv_mov_b32 v{M+1}, v{OA+12}\nv_permlane32_swap_b32 v{M}, v{M+1}\nv_rcp_f32 v{M}, v{M+1}")
    for m in range(2):
        for i in range(4):
            r = OA + 8*m + 2*i
            a(f"v_pk_mul_f32 v[{r}:{r+1}], v[{r}:{r+1}], v[{M}:{M+1}] op_sel_hi:[1,0]")
        for i in range(4):
            a(f"v_cvt_pk_bf16_f32 v{20+4*m+i}, v{OA+8*m+2*i}, v{OA+8*m+2*i+1}")
        if m:
            a("v_cndmask_b32 v26, v26, 0, s[30:31]\nv_cndmask_b32 v27, v27, 0, s[30:31]")
        a(f"buffer_store_dwordx4 v[{20+4*m}:{23+4*m}], v8, {WS}, s42 offen offset:{1024*m} sc1")
    set_flag(a, "s61", 200)
    st(a, 4)
    a("s_barrier")
    a(f"s_cmp_ge_u32 s2, 224\ns_cbranch_scc1 {N}_colsum")


def g64_addr(a, WA, wbase):
    a("v_lshrrev_b32 v4, 5, v1\nv_bfe_u32 v3, v1, 2, 2\nv_lshl_add_u32 v5, v4, 2, v3\nv_lshlrev_b32 v5, 7, v5")
    a("v_bfe_u32 v6, v1, 4, 1\nv_lshlrev_b32 v6, 1, v6\nv_bfe_u32 v7, v1, 1, 1\nv_add_u32 v6, v6, v7")
    a("s_lshl_b32 s47, s45, 2\nv_add_u32 v6, s47, v6")
    a("v_lshrrev_b32 v7, 1, v3\nv_lshlrev_b32 v7, 2, v7\nv_xor_b32 v6, v6, v7")
    a(f"v_lshl_add_u32 v5, v6, 4, v5\nv_and_b32 v7, 1, v1\nv_lshl_add_u32 v{WA}, v7, 3, v5")
    if wbase:
        a(f"v_add_u32 v{WA}, {wbase}, v{WA}")


HKEEP = 108


def cons_p3(a):
    a.vm, a.lg = [], []
    tile64(a)
    a("s_and_b32 s44, s36, 1\ns_lshr_b32 s45, s36, 1")
    a("v_and_b32 v3, 31, v1\nv_lshrrev_b32 v4, 5, v1\nv_lshlrev_b32 v10, 6, v3\nv_lshl_add_u32 v10, v4, 3, v10\n"
      f"s_lshl_b32 s47, s36, 11\ns_add_u32 s47, s47, {P3_X}\nv_add_u32 v10, s47, v10")
    RES = 96
    for g in range(4):
        a(f"ds_read_b64 v[{RES+2*g}:{RES+2*g+1}], v10 offset:{16*g}", tag="x")
    a("s_lshl_b32 s46, s37, 6\ns_lshl_b32 s47, s44, 5\ns_add_u32 s46, s46, s47")
    a("s_lshl_b32 s52, s37, 1\ns_add_u32 s52, s52, s44\ns_mul_i32 s52, s52, 28\ns_lshl_b32 s53, s38, 2\n"
      "s_add_u32 s52, s52, s53\ns_lshl_b32 s53, s45, 1\ns_add_u32 s52, s52, s53\ns_lshl_b32 s52, s52, 10\n"
      f"s_add_u32 s52, s52, {H_OFF}\nv_lshlrev_b32 v13, 4, v1")
    a(f"v_add_u32 v9, s46, v3\nv_lshlrev_b32 v9, 4, v9\ns_mul_i32 s54, s38, {S*16}\ns_lshl_b32 s53, s45, 3\n"
      f"s_add_u32 s54, s54, s53\ns_add_u32 s54, s54, {ST_OFF}\ns_mov_b32 s55, {ONES_BF16}")
    a(f"s_lshr_b32 s61, s37, 1\ns_lshl_b32 s61, s61, 4\ns_and_b32 s53, s37, 1\ns_mul_i32 s53, s53, 7\ns_add_u32 s61, s61, s53\n"
      f"s_add_u32 s61, s61, s38\ns_lshl_b32 s61, s61, {FSH()}\n"
      f"s_add_u32 s61, s61, {FL_OFF + 3*FREG}")
    HA, WA = 104, 105
    a(f"s_lshl_b32 s47, s44, 12\nv_add_u32 v{HA}, s47, v13")
    g64_addr(a, WA, P3_W)
    a("s_mov_b32 s50, 0xffff0000")
    a.wait(lg="x")
    for j in range(8):
        a(f"v_lshlrev_b32 v{16+2*j}, 16, v{RES+j}\nv_and_b32 v{17+2*j}, s50, v{RES+j}")
    gbar(a, 1)
    for c in range(9):
        if c < 8 and c % 2 == 0:
            a("s_barrier")
        if c == 0: st(a, 5)
        fb = 32 + 32 * (c & 1)
        fbp = 32 + 32 * ((c - 1) & 1)
        if c == 8:
            a("s_waitcnt lgkmcnt(0)\ns_barrier")
        for s in range(4):
            if c:
                a.wait(lg=[("f", c - 1, s)])
                a(f"v_mfma_f32_32x32x16_bf16 v[16:31], v[{fbp+4+8*s}:{fbp+7+8*s}], v[{fbp+8*s}:{fbp+3+8*s}], v[16:31]")
            if c < 8:
                a(f"ds_read_b128 v[{fb+8*s}:{fb+3+8*s}], v{HA} offset:{c*8192 + s*1024}", tag=("f", c, s))
                a(f"ds_read_b64_tr_b16 v[{fb+4+8*s}:{fb+5+8*s}], v{WA} offset:{c*8192 + s*2048}", tag=("f", c, s))
                a(f"ds_read_b64_tr_b16 v[{fb+6+8*s}:{fb+7+8*s}], v{WA} offset:{c*8192 + s*2048 + 1024}", tag=("f", c, s))
    H = HKEEP
    for m in range(2):
        for i in range(4):
            a(f"v_cvt_pk_bf16_f32 v{H+4*m+i}, v{16+8*m+2*i}, v{17+8*m+2*i}")
        a(f"buffer_store_dwordx4 v[{H+4*m}:{H+4*m+3}], v13, {WS}, s52 offen offset:{1024*m} sc1")
    for j in range(8):
        c0, c1 = ("0", "0") if j == 0 else ("v40", "v41")
        a(f"v_dot2_f32_bf16 v40, v{H+j}, s55, {c0}\nv_dot2_f32_bf16 v41, v{H+j}, v{H+j}, {c1}")
    a("v_mov_b32 v42, v40\nv_mov_b32 v43, v41\nv_permlane32_swap_b32 v40, v42\nv_permlane32_swap_b32 v41, v43\n"
      "v_add_f32 v40, v40, v42\nv_add_f32 v41, v41, v43")
    a("s_mov_b32 exec_hi, 0")
    a(f"buffer_store_dwordx2 v[40:41], v9, {WS}, s54 offen sc1")
    a("s_mov_b64 exec, -1")
    set_flag(a, "s61", 44)
    st(a, 6)
    if opt("eb", 1): a("s_barrier")


def cons_p4(a):
    a.vm, a.lg = [], []
    SLOT, AUX = P4_SLOT, P4_AUX
    tile_kc(a)
    ACC, FR = 128, 32
    NM, C2, K0, K1 = 120, 122, 124, 126
    acc = lambda b, t: ACC + 64*b + 16*t
    a("s_and_b32 s43, s36, 1\ns_lshr_b32 s44, s36, 1\nv_lshrrev_b32 v4, 5, v1")
    a("s_lshl_b32 s47, s43, 13\nv_lshlrev_b32 v19, 4, v1\nv_add_u32 v20, s47, v19")
    a("v_bfe_u32 v5, v1, 2, 2\nv_bfe_u32 v6, v1, 4, 1\nv_lshl_add_u32 v7, v4, 2, v5\nv_lshlrev_b32 v7, 8, v7")
    a("v_lshl_add_u32 v7, v6, 14, v7\nv_and_b32 v8, 3, v1\nv_lshl_add_u32 v7, v8, 3, v7\nv_add_u32 v7, 16384, v7")
    a("v_lshl_add_u32 v5, v6, 2, v5\ns_lshl_b32 s47, s44, 2\nv_xor_b32 v5, s47, v5")
    a("v_lshl_add_u32 v24, v5, 5, v7\nv_xor_b32 v25, 32, v24\nv_xor_b32 v26, 64, v24\nv_xor_b32 v27, 96, v24")
    for r in range(ACC, ACC + 128):
        a(f"v_mov_b32 v{r}, 0")
    a("s_lshl_b32 s56, s37, 1\ns_add_u32 s56, s56, s43\ns_mul_i32 s56, s56, 224\ns_lshl_b32 s47, s38, 3\n"
      "s_add_u32 s56, s56, s47\ns_lshl_b32 s47, s44, 2\ns_add_u32 s56, s56, s47\ns_lshl_b32 s56, s56, 10\n"
      f"s_add_u32 s56, s56, {HH_OFF}\ns_add_u32 s55, s56, {112*1024}")
    a(f"s_lshl_b32 s47, s43, 10\ns_add_u32 s47, s47, {AUX}\nv_add_u32 v16, s47, v19")
    a(f"s_lshl_b32 s47, s44, 8\ns_add_u32 s47, s47, {AUX + 14336}\nv_lshlrev_b32 v15, 4, v4\nv_add_u32 v15, s47, v15")
    a(f"s_lshl_b32 s61, s37, 4\ns_add_u32 s61, s61, s38\n"
      f"s_lshl_b32 s61, s61, {FSH()}\ns_add_u32 s61, s61, {FL_OFF + 4*FREG}")
    SL = 80
    hf_ = lambda s, b: FR + 24*(s & 1) + 4*b
    wf_ = lambda s, t: FR + 24*(s & 1) + 8 + 4*t

    def reads(s):
        out = []
        for i in range(4):
            if i < 2:
                out.append((f"ds_read_b128 v[{hf_(s,i)}:{hf_(s,i)+3}], v20 offset:{i*4096 + s*1024}", ("f", s, 0)))
            r = wf_(s, i)
            out.append((f"ds_read_b64_tr_b16 v[{r}:{r+1}], v{24+i} offset:{s*4096}", ("f", s, i >> 1)))
            out.append((f"ds_read_b64_tr_b16 v[{r+2}:{r+3}], v{24+i} offset:{s*4096+2048}", ("f", s, i >> 1)))
        return out

    def step(s, rds, extra={}, pre={}):
        rds = list(rds)
        for i in range(8):
            t, b = i >> 1, i & 1
            if i in pre:
                pre[i]()
            if i % 4 == 0:
                a.wait(lg=[("f", s, i >> 2)])
            d = acc(b, t)
            a(f"v_mfma_f32_32x32x16_bf16 v[{d}:{d+15}], v[{wf_(s,t)}:{wf_(s,t)+3}], v[{hf_(s,b)}:{hf_(s,b)+3}], v[{d}:{d+15}]")
            if not (pre and i < min(pre)):
                for _ in range(2):
                    if rds:
                        t_, tag = rds.pop(0)
                        a(t_, tag=tag)
            if i in extra:
                e = extra[i]
                e() if callable(e) else a(e)
        assert not rds
    gbar(a, 2)
    a("s_barrier")
    st(a, 7)
    for t, tag in reads(0):
        a(t, tag=tag)
    a(f"s_mov_b32 s47, 0\ns_mov_b32 s49, 0\ns_mov_b32 s46, {SLOT}")
    a(f"{N}_p4loop:")
    step(0, reads(1), {0: f"s_add_u32 s47, s47, 1\ns_add_u32 s49, s49, 1\ns_cmp_eq_u32 s49, 3\ns_cselect_b32 s49, 0, s49\n"
                          f"s_cselect_b32 s48, {(-2*SLOT) & 0xffffffff}, s46"})
    step(1, reads(2))
    step(2, reads(3), {6: "v_add_u32 v20, s48, v20\nv_add_u32 v24, s48, v24\nv_add_u32 v25, s48, v25",
                       7: "v_add_u32 v26, s48, v26\nv_add_u32 v27, s48, v27"})
    a(f"s_cmp_eq_u32 s47, 7\ns_cbranch_scc1 {N}_p4last")
    saved = list(a.lg)
    step(3, reads(0), pre={2: lambda: a("s_waitcnt lgkmcnt(0)\ns_barrier")})
    a(f"s_branch {N}_p4loop")
    a(f"{N}_p4last:")
    a.lg = saved
    k0 = -2.0 * math.sqrt(2.0 / math.pi) * math.log2(math.e)
    sv = []
    for s_, n in ((14, 14), (6, 6), (12, 2)):
        sv += [f"v_add_f32 v{SL+i}, v{SL+i}, v{SL+s_+i}" for i in range(n)]
    sv += [f"v_add_f32 v{SL+2+i}, v{SL+2+i}, v{SL+4+i}" for i in range(2)]
    sv += [f"v_add_f32 v{SL+i}, v{SL+i}, v{SL+2+i}" for i in range(2)]
    sv += [f"v_mul_f32 v{NM}, {fx(-1.0/D)}, v{SL}", f"v_mul_f32 v{C2}, {fx(1.0/D)}, v{SL+1}",
           f"v_fma_f32 v{C2}, -v{NM}, v{NM}, v{C2}", f"v_mov_b32 v{NM+1}, v{NM}",
           f"v_max_f32 v{C2}, 0, v{C2}", f"v_add_f32 v{C2}, {fx(1e-5)}, v{C2}",
           f"v_permlane32_swap_b32 v{NM}, v{NM+1}",
           f"v_rsq_f32 v13, v{C2}", f"v_mov_b32 v{C2+1}, v{C2}", f"v_mul_f32 v{K0}, {fx(k0)}, v13", "v_mul_f32 v14, v13, v13",
           f"v_mul_f32 v14, v14, v{K0}", f"v_mul_f32 v{K1}, {fx(0.044715)}, v14", f"v_mov_b32 v{K0+1}, v{K0}",
           f"v_mov_b32 v{K1+1}, v{K1}", f"v_permlane32_swap_b32 v{C2}, v{C2+1}", f"v_permlane32_swap_b32 v{K0}, v{K0+1}",
           f"v_permlane32_swap_b32 v{K1}, v{K1+1}"]
    strd = [(f"ds_read_b128 v[{SL+4*p}:{SL+4*p+3}], v16 offset:{p*2048}", "st") for p in range(7)]

    def part(lo, hi, w=False):
        def f():
            if w: a.wait(lg="st")
            for x in sv[lo:hi]:
                a(x)
        return f
    step(3, strd, {5: part(0, 6, True), 6: part(6, 12), 7: part(12, 26)})
    csr = lambda t: (32, 48, 64, 84)[t]
    for t in range(4):
        for q in range(4):
            r = csr(t) + 4*q
            a(f"ds_read_b128 v[{r}:{r+3}], v15 offset:{(q >> 1)*512 + t*64 + (q & 1)*32}", tag=("cs", t))
    part(26, len(sv))()
    a("s_waitcnt lgkmcnt(0)\ns_barrier")
    st(a, 8)
    T = 100
    for t in range(4):
        for b in range(2):
            g0, u0 = acc(b, t), acc(b, t) + 8
            sel3 = "op_sel_hi:[1,0,0]" if b == 0 else "op_sel:[0,1,1] op_sel_hi:[1,1,1]"
            selm = "op_sel_hi:[1,0,1]" if b == 0 else "op_sel:[0,1,0] op_sel_hi:[1,1,1]"
            pr = lambda x, j: f"v[{x+2*j}:{x+2*j+1}]"
            out = []
            out += [f"v_pk_fma_f32 {pr(g0,j)}, {pr(csr(t),j)}, v[{NM}:{NM+1}], {pr(g0,j)} {selm}" for j in range(8)]
            out += [f"v_pk_mul_f32 {pr(T,j)}, {pr(g0,j)}, {pr(g0,j)}" for j in range(4)]
            out += [f"v_pk_fma_f32 {pr(T,j)}, {pr(T,j)}, v[{K1}:{K1+1}], v[{K0}:{K0+1}] {sel3}" for j in range(4)]
            out += [f"v_pk_mul_f32 {pr(T,j)}, {pr(T,j)}, {pr(g0,j)}" for j in range(4)]
            out += [f"v_exp_f32 v{T+j}, v{T+j}" for j in range(8)]
            out += [f"v_pk_mul_f32 {pr(g0,j)}, {pr(g0,j)}, {pr(u0,j)}" for j in range(4)]
            out += [f"v_pk_fma_f32 {pr(T,j)}, {pr(T,j)}, v[{C2}:{C2+1}], v[{C2}:{C2+1}] {sel3}" for j in range(4)]
            out += [f"v_rcp_f32 v{T+j}, v{T+j}" for j in range(8)]
            out += [f"v_pk_mul_f32 {pr(g0,j)}, {pr(g0,j)}, {pr(T,j)}" for j in range(4)]
            out += [f"v_cvt_pk_bf16_f32 v{u0+j}, v{g0+2*j}, v{g0+2*j+1}" for j in range(4)]
            out += [f"buffer_store_dwordx4 v[{u0}:{u0+3}], v19, {WS}, s{56-b} offen offset:{1024*t} sc1"]
            for it in out:
                a(it)
    set_flag(a, "s61", 44)
    st(a, 9)
    if opt("eb", 1): a("s_barrier")


def cons_p5(a):
    a.vm, a.lg = [], []
    tile64(a)
    a("s_and_b32 s44, s36, 1\ns_lshr_b32 s45, s36, 1")
    a("s_lshl_b32 s46, s37, 6\ns_lshl_b32 s47, s44, 5\ns_add_u32 s46, s46, s47")
    a("v_lshrrev_b32 v6, 2, v1\nv_add_u32 v8, s46, v6\nv_mul_u32_u24 v14, 896, v8")
    a("v_and_b32 v7, 3, v1\nv_lshl_add_u32 v14, v7, 4, v14")
    a(f"s_lshl_b32 s47, s45, 6\ns_add_u32 s47, s47, s42\nv_add_u32 v14, s47, v14\nv_add_u32 v15, {16*896}, v14")
    a(f"s_mul_i32 s51, s36, 2560\ns_add_u32 s51, s51, {4*8192}")
    a("v_mul_u32_u24 v11, 80, v6\nv_lshl_add_u32 v11, v7, 4, v11\nv_add_u32 v11, s51, v11")
    a("v_and_b32 v3, 31, v1\nv_lshrrev_b32 v4, 5, v1\nv_mul_u32_u24 v10, 80, v3\nv_lshl_add_u32 v10, v4, 3, v10\n"
      "v_add_u32 v10, s51, v10")
    HA, WA = 104, 105
    a(f"s_lshl_b32 s47, s44, 12\ns_add_u32 s47, s47, {P5_A}\nv_lshlrev_b32 v{HA}, 4, v1\nv_add_u32 v{HA}, s47, v{HA}")
    g64_addr(a, WA, 0)
    a(f"v_add_u32 v{WA+1}, 0x10000, v{WA}\ns_mov_b32 s50, 0xffff0000")
    a.srd(16, 66, XB)
    for j in range(8):
        a(f"v_lshlrev_b32 v{16+2*j}, 16, v{HKEEP+j}\nv_and_b32 v{17+2*j}, s50, v{HKEEP+j}")
    gbar(a, 3)
    for c in range(29):
        if c < 28:
            a("s_barrier")
        if c == 0: st(a, 10)
        fb = 32 + 32 * (c & 1)
        fbp = 32 + 32 * ((c - 1) & 1)
        wo = (c % P5_NW) * 8192
        wa, wo = WA + wo // 65536, wo % 65536
        ao = (c % P5_NA) * 8192
        for s in range(4):
            if c:
                a.wait(lg=[("f", c - 1, s)])
                a(f"v_mfma_f32_32x32x16_bf16 v[16:31], v[{fbp+4+8*s}:{fbp+7+8*s}], v[{fbp+8*s}:{fbp+3+8*s}], v[16:31]")
            if c < 28:
                a(f"ds_read_b128 v[{fb+8*s}:{fb+3+8*s}], v{HA} offset:{ao + s*1024}", tag=("f", c, s))
                a(f"ds_read_b64_tr_b16 v[{fb+4+8*s}:{fb+5+8*s}], v{wa} offset:{wo + s*2048}", tag=("f", c, s))
                a(f"ds_read_b64_tr_b16 v[{fb+6+8*s}:{fb+7+8*s}], v{wa} offset:{wo + s*2048 + 1024}", tag=("f", c, s))
    for g in range(4):
        a(f"v_cvt_pk_bf16_f32 v{32+2*g}, v{16+4*g}, v{17+4*g}\nv_cvt_pk_bf16_f32 v{33+2*g}, v{18+4*g}, v{19+4*g}")
        a(f"ds_write_b64 v10, v[{32+2*g}:{33+2*g}] offset:{16*g}", tag="ew")
    a("ds_read_b128 v[40:43], v11", tag="er0")
    a(f"ds_read_b128 v[44:47], v11 offset:{16*80}", tag="er1")
    for i in range(2):
        a.wait(lg=f"er{i}")
        a(f"buffer_store_dwordx4 v[{40+4*i}:{43+4*i}], v{14+i}, s[16:19], 0 offen")
    st_flush(a)
    a("s_endpgm")


def colsum(a):
    a.vm, a.lg = [], []
    a(f"{N}_colsum:")
    a(f"s_cmp_ge_u32 s2, 252\ns_cbranch_scc1 {N}_end")
    a("s_sub_u32 s37, s2, 224\ns_cmp_ge_u32 s37, 14\ns_cselect_b32 s38, 14, 0\ns_cselect_b32 s16, s14, s12\n"
      "s_cselect_b32 s17, s15, s13\ns_sub_u32 s38, s37, s38\ns_lshl_b32 s38, s38, 8")
    a(f"s_mov_b32 s18, {WFB}\ns_mov_b32 s19, 0x20000")
    a(f"v_lshrrev_b32 v3, 4, v1\ns_mul_i32 s39, s36, 56\nv_add_u32 v3, s39, v3\nv_mul_u32_u24 v3, {DF*2}, v3")
    a("v_and_b32 v4, 15, v1\nv_lshl_add_u32 v3, v4, 4, v3\nv_add_u32 v3, s38, v3")
    for i in range(14):
        a(f"s_mov_b32 s40, {i*4*DF*2}")
        a(f"buffer_load_dwordx4 v[{32+4*i}:{35+4*i}], v3, s[16:19], s40 offen", tag=("cs", i))
    a("s_mov_b32 s50, 0xffff0000")
    for i in range(14):
        a.wait(vm=[("cs", i)])
        for j in range(4):
            r = 32 + 4*i + j
            if i == 0:
                a(f"v_lshlrev_b32 v{8+2*j}, 16, v{r}\nv_and_b32 v{9+2*j}, s50, v{r}")
            else:
                a(f"v_lshlrev_b32 v16, 16, v{r}\nv_and_b32 v17, s50, v{r}\n"
                  f"v_add_f32 v{8+2*j}, v{8+2*j}, v16\nv_add_f32 v{9+2*j}, v{9+2*j}, v17")
    a("v_lshlrev_b32 v5, 5, v0")
    a("ds_write_b128 v5, v[8:11]\nds_write_b128 v5, v[12:15] offset:16")
    a("s_waitcnt lgkmcnt(0)\ns_barrier")
    a(f"s_cmp_ge_u32 s36, 2\ns_cbranch_scc1 {N}_end")
    a("v_lshlrev_b32 v5, 2, v0")
    for i in range(32):
        a(f"ds_read_b32 v{32+i}, v5 offset:{i*512}")
    a("s_waitcnt lgkmcnt(0)")
    for s_ in (16, 8, 4, 2, 1):
        for i in range(s_):
            a(f"v_add_f32 v{32+i}, v{32+i}, v{32+i+s_}")
    a(f"s_lshl_b32 s41, s37, 9\ns_add_u32 s41, s41, {CS_OFF}")
    a(f"buffer_store_dword v32, v5, {WS}, s41 offen sc1")
    a(f"s_lshl_b32 s61, s37, 1\ns_add_u32 s61, s61, s36\ns_lshl_b32 s61, s61, {FSH()}\ns_add_u32 s61, s61, {FL_OFF + 5*FREG}")
    set_flag(a, "s61", 44, direct=True)
    st(a, 9)
    st_flush(a)


KNAME = "sequential_preLN__sliding_block__glu_gated_geglu__prompt_kernel"


def mega():
    a = Asm()
    st(a, 0)
    a("s_load_dwordx4 s[4:7], s[0:1], 0\ns_load_dwordx2 s[8:9], s[0:1], 16\ns_load_dwordx4 s[12:15], s[0:1], 32\n"
      "s_load_dwordx8 s[64:71], s[0:1], 48")
    lane_wave(a)
    a(f"s_cmp_ge_u32 s2, 256\ns_cbranch_scc1 {N}_end")
    a("s_and_b32 s57, s2, 7\ns_lshr_b32 s58, s2, 3\ns_and_b32 s59, s36, 3")
    a(f"s_cmp_lt_u32 s36, 4\ns_cbranch_scc1 {N}_cons")
    loader(a)
    a(f"{N}_cons:")
    a.vm, a.lg = [], []
    cons_p1(a)
    cons_p2(a)
    cons_p3(a)
    cons_p4(a)
    cons_p5(a)
    colsum(a)
    a(f"{N}_end:")
    a("s_endpgm")
    return a.lines


if __name__ == "__main__":
    args = sys.argv[1:]
    if "--stamp" in args:
        Cfg.stamp = True
        args.remove("--stamp")
    for x in list(args):
        if "=" in x:
            k, v = x.split("=")
            Cfg.opts[k] = int(v)
            args.remove(x)
    lines = mega()
    ref = open("sequential_preLN__sliding_block__glu_gated_geglu__prompt.s.ref").read()
    out = [l for l in ref.split("\n") if l.startswith(";") and "@launch" not in l and "Override" not in l
           and "grid=ceil" not in l]
    out.append("; @launch grid=(256,1,1) block=(512,1,1) lds=163840")
    out += ['.amdgcn_target "amdgcn-amd-amdhsa--gfx950"', ".text"]
    out += kernel_head(KNAME)
    out += hazard_pass_fast(lines)
    out += ["code_end:", "    s_endpgm", '.section .rodata,"a"']
    out += kernel_desc(KNAME, 256)
    open(args[0] if args else "m_all.s", "w").write("\n".join(out) + "\n")
```

```python
from common import *

HB = 147456
FL_OFF = 30 << 20
WSB = 48 << 20
WS = "s[72:75]"
NEG = fx(-1e30)
NEGB = f32bits(-1e30) >> 16
SPIN = 1 << 15
lg2 = lambda x: x.bit_length() - 1
N = "mk"
FREG = 65536
FSH = lambda: opt("fsh", 6)
CNT = 163836
FS = lambda: " sc0 sc1" if opt("fs", 1) == 2 else " sc1"


def st(a, i):
    if Cfg.stamp:
        a(f"s_memrealtime s[{76+2*i}:{77+2*i}]")


def st_flush(a):
    if not Cfg.stamp:
        return
    a("s_mov_b64 exec, -1\ns_waitcnt vmcnt(0) lgkmcnt(0)")
    st(a, 11)
    a("s_waitcnt lgkmcnt(0)")
    a(f"s_lshl_b32 s3, s2, 4\ns_add_u32 s3, s3, s36\ns_lshl_b32 s3, s3, 6\ns_add_u32 s3, s3, {DBG_OFF}")
    for i in range(12):
        a(f"v_mov_b32 v{4+i}, s{76+2*i}")
    a("v_mov_b32 v3, 0\ns_mov_b64 exec, 1")
    if opt("dbgt", 0):
        l = uid()
        a(f"s_cmp_lg_u32 s36, 0\ns_cbranch_scc1 {l}\ns_cmp_ge_u32 s2, 224\ns_cbranch_scc1 {l}")
        a.srd(32, 68, 256)
        for i in range(12):
            a(f"buffer_atomic_umax v{4+i}, v3, s[32:35], 0 offen offset:{8+4*i}")
        a("v_not_b32 v16, v4\nbuffer_atomic_umax v16, v3, s[32:35], 0 offen offset:4")
        a(f"{l}:")
    for i in range(0, 12, 4):
        a(f"buffer_store_dwordx4 v[{4+i}:{7+i}], v3, {WS}, s3 offen offset:{4*i}")


_uid = [0]


def uid():
    _uid[0] += 1
    return f"{N}_{_uid[0]}"


def get_epoch(a, t):
    l = uid()
    a.srd(32, 68, 256)
    a(f"v_mov_b32 v{t}, 0\ns_mov_b32 s62, 0")
    a(f"{l}:")
    a(f"buffer_load_dword v{t+1}, v{t}, s[32:35], 0 offen" + FS(), maybe=True)
    a(f"s_waitcnt vmcnt(0)\nv_readfirstlane_b32 s63, v{t+1}\ns_add_u32 s62, s62, 1\ns_cmp_lg_u32 s63, 0\n"
      f"s_cbranch_scc1 {l}d\ns_sleep 2\ns_cmp_lt_u32 s62, {SPIN}\ns_cbranch_scc1 {l}")
    a(f"{l}d:")


def poll(a, vaddr, t, ph=0):
    l = uid()
    one = opt("one", 15) >> ph & 1
    if one:
        a(f"s_cmp_lg_u32 s59, 0\ns_cbranch_scc1 {l}d")
    a("s_mov_b32 s62, 0")
    a(f"{l}:")
    a(f"buffer_load_dword v{t}, v{vaddr}, {WS}, 0 offen" + FS(), maybe=True)
    a(f"s_waitcnt vmcnt(0)\nv_cmp_ne_u32 vcc, s63, v{t}\ns_add_u32 s62, s62, 1\ns_nop 3\ns_cbranch_vccz {l}d\n"
      f"s_sleep {opt('slp', 1)}\ns_cmp_lt_u32 s62, {SPIN}\ns_cbranch_scc1 {l}")
    a(f"{l}d:")
    if one:
        a("s_waitcnt vmcnt(0)\ns_barrier")
    a.vm = []


def gbar(a, ph):
    if opt("one", 15) >> ph & 1:
        a("s_barrier")


def set_flag(a, soff, t, direct=False):
    l = uid()
    a(f"v_mov_b32 v{t}, {CNT}\nv_mov_b32 v{t+1}, 1\ns_mov_b64 exec, 1\ns_waitcnt vmcnt(0)")
    if not direct:
        a(f"ds_add_rtn_u32 v{t+1}, v{t}, v{t+1}", maybe=True)
        a(f"s_waitcnt lgkmcnt(0)\nv_readfirstlane_b32 s62, v{t+1}\ns_and_b32 s62, s62, 3\ns_cmp_lg_u32 s62, 3\n"
          f"s_cbranch_scc1 {l}")
    a(f"v_mov_b32 v{t}, 0\nv_mov_b32 v{t+1}, s63")
    a(f"buffer_store_dword v{t+1}, v{t}, {WS}, {soff} offen" + FS(), maybe=True)
    a(f"{l}:")
    a("s_mov_b64 exec, -1")


def rb_col(a, n):
    groups, nr = 16 // n, 32 // n
    a(f"s_lshr_b32 s37, s57, {lg2(groups)}\ns_lshl_b32 s37, s37, {lg2(nr)}\ns_and_b32 s39, s58, {nr-1}\n"
      "s_add_u32 s37, s37, s39")
    a(f"s_and_b32 s38, s57, {groups-1}\ns_lshl_b32 s38, s38, {lg2(n)}\ns_lshr_b32 s40, s58, {lg2(nr)}\n"
      "s_add_u32 s38, s38, s40")


def tile64(a):
    a("s_and_b32 s39, s58, 3\ns_lshl_b32 s37, s57, 2\ns_add_u32 s37, s37, s39\ns_lshr_b32 s38, s58, 2\n"
      "s_lshl_b32 s42, s38, 7")


def tile_kc(a):
    a("s_lshr_b32 s37, s57, 1\ns_lshl_b32 s37, s37, 2\ns_and_b32 s39, s58, 3\ns_add_u32 s37, s37, s39\n"
      "s_and_b32 s38, s57, 1\ns_mul_i32 s38, s38, 7\ns_lshr_b32 s40, s58, 2\ns_add_u32 s38, s38, s40\n"
      "s_lshl_b32 s45, s38, 8")


def touch_share(a, ptr, nbytes, t, per_xcd=False, nwg=256):
    lines = nbytes // 128
    per = -(-lines // ((32 if per_xcd else nwg) * 4))
    assert per <= 64
    a.srd(32, ptr, nbytes)
    a(f"s_lshl_b32 s56, {'s58' if per_xcd else 's2'}, 2\ns_add_u32 s56, s56, s59\ns_mul_i32 s56, s56, {per*128}")
    a(f"v_min_u32 v{t}, {per-1}, v1\nv_lshlrev_b32 v{t}, 7, v{t}")
    a(f"buffer_load_dword v{t+1}, v{t}, s[32:35], s56 offen", tag="pf")


P1_SLOT, P1_NS = 28672, 5
P1_MISC = P1_NS * P1_SLOT
P3_W, P3_X = 65536, 131072
P4_SLOT = 49152
P4_AUX = 3 * P4_SLOT
P5_NW, P5_NA = 13, 6
P5_A = P5_NW * 8192
P5_EP = 0


def loader(a):
    rb_col(a, opt("k1_ng", 8))
    a("s_mul_i32 s42, s38, 168")
    a("v_lshrrev_b32 v3, 3, v1\nv_and_b32 v4, 7, v1\nv_lshrrev_b32 v5, 1, v3")
    a("s_lshl_b32 s46, s59, 5\ns_lshl_b32 s47, s37, 7\ns_add_u32 s46, s46, s47\nv_add_u32 v6, s46, v3\n"
      "v_mul_u32_u24 v6, 896, v6")
    a("v_xor_b32 v7, v4, v5\nv_lshl_add_u32 v12, v7, 4, v6")
    a(f"v_xor_b32 v7, 4, v7\nv_lshl_add_u32 v13, v7, 4, v6\nv_add_u32 v13, {8*896-1024}, v13")
    a(f"v_add_u32 v14, {16*896-2048}, v12\nv_add_u32 v15, {16*896-2048}, v13")
    a(f"s_mul_i32 s41, s59, {16*2688}\ns_add_u32 s41, s41, s42\nv_mov_b32 v9, {OOB}")
    for i in range(3):
        a(f"v_add_u32 v3, {64*i}, v1\nv_mul_u32_u24 v4, 5462, v3\nv_lshrrev_b32 v4, 16, v4\nv_mul_u32_u24 v5, 12, v4\n"
          f"v_sub_u32 v5, v3, v5\nv_mul_u32_u24 v4, 2688, v4\nv_lshl_add_u32 v4, v5, 4, v4\nv_add_u32 v4, s41, v4\n"
          f"v_subrev_u32 v4, {1024*i}, v4\nv_cmp_eq_u32 vcc, 11, v5\nv_cndmask_b32 v{20+i}, v4, v9, vcc")
    a("s_lshl_b32 s49, s59, 12\ns_mul_i32 s44, s59, 3072\ns_add_u32 s44, s44, 16384")
    a("s_waitcnt lgkmcnt(0)")
    a.srd(16, 4, XB)
    a.srd(20, 6, D * 3 * D * 2)

    def chunk1(c):
        sl = (c % P1_NS) * P1_SLOT
        a(f"s_add_u32 m0, s49, {sl}\ns_movk_i32 s52, {c*128}")
        for i in range(4):
            a(f"buffer_load_dwordx4 v{12+i}, s[16:19], s52 offen offset:{1024*i} lds", tag=("c", c))
        a(f"s_add_u32 m0, s44, {sl}\ns_mov_b32 s51, {c*64*2688}")
        for i in range(3):
            a(f"buffer_load_dwordx4 v{20+i}, s[20:23], s51 offen offset:{1024*i} lds", tag=("c", c))
    chunk1(0)
    chunk1(1)
    a.srd(72, 70, WSB)
    for c in range(7):
        a.wait(vm=[("c", c)])
        a("s_barrier")
        if c + 2 < 7:
            chunk1(c + 2)
    st(a, 1)
    a(f"s_cmp_lg_u32 s59, 0\ns_cbranch_scc1 {N}_lne")
    get_epoch(a, 24)
    a(f"{N}_lne:")
    if opt("pfo", 1): touch_share(a, 8, D*D*2, 24, per_xcd=True)
    rb_col(a, opt("k2_nh", 2))
    a("v_mov_b32 v3, v1\nv_cmp_lt_u32 vcc, 6, v3\nv_cndmask_b32 v3, v3, 0, vcc\nv_add_u32 v3, 2, v3\n"
      "v_mul_u32_u24 v4, 43, v3\nv_lshrrev_b32 v4, 7, v4\nv_mul_u32_u24 v5, 3, v4\nv_sub_u32 v5, v3, v5")
    a("v_cmp_eq_u32 vcc, 0, v4\nv_cndmask_b32 v5, v5, 0, vcc\nv_sub_u32 v5, s37, v5\nv_mov_b32 v6, s37\n"
      "v_cmp_gt_i32 vcc, 0, v5\nv_cndmask_b32 v5, v5, v6, vcc")
    a("v_lshlrev_b32 v4, 4, v4\nv_add_u32 v4, s38, v4\nv_mul_u32_u24 v4, 43, v4\nv_lshrrev_b32 v4, 7, v4")
    a(f"v_lshl_add_u32 v30, v5, 4, v4\nv_lshlrev_b32 v30, {FSH()}, v30\nv_add_u32 v30, {FL_OFF + FREG}, v30")
    a(f"s_mul_i32 s60, s38, {HB}\ns_lshl_b32 s61, s37, 13\ns_add_u32 s60, s60, s61\ns_add_u32 s60, s60, {KV_OFF}\n"
      "v_lshlrev_b32 v8, 4, v1\nv_lshrrev_b32 v2, 5, v1\nv_lshlrev_b32 v3, 6, v2\nv_xor_b32 v6, v8, v3\n"
      "v_xor_b32 v7, 128, v6")
    a("s_lshl_b32 s43, s59, 11\ns_add_u32 s61, s60, s43\ns_add_u32 s61, s61, 16384")
    a(f"s_mul_i32 s44, s59, 6144\ns_add_u32 s60, s60, s44\ns_add_u32 s60, s60, {IMGB}")
    a("s_lshl_b32 s46, s37, 2\ns_mul_i32 s47, s59, 3\ns_add_u32 s46, s46, s47")
    for p in range(3):
        a(f"s_add_u32 s47, s46, {p}\ns_add_u32 s{48+p}, s60, {p*2048}\ns_cmp_ge_u32 s47, 8\ns_cselect_b32 s{48+p}, s{48+p}, {OOB}")
    a("s_barrier")
    if opt("eb", 1): a("s_barrier")
    poll(a, 30, 31, 0)
    st(a, 2)
    for p in range(3):
        a(f"s_add_u32 m0, s44, {p*2048}")
        a(f"buffer_load_dwordx4 v8, {WS}, s{48+p} offen sc1 lds", tag="k")
        a(f"buffer_load_dwordx4 v8, {WS}, s{48+p} offen offset:1024 sc1 lds", tag="k")
    a("s_add_u32 m0, s43, 49152")
    a(f"buffer_load_dwordx4 v8, {WS}, s61 offen sc1 lds", tag="k")
    a(f"buffer_load_dwordx4 v8, {WS}, s61 offen offset:1024 sc1 lds", tag="k")
    for p in range(3):
        a(f"s_add_u32 m0, s44, {24576 + p*2048}\ns_add_u32 s52, s{48+p}, {IMGB}")
        a(f"buffer_load_dwordx4 v6, {WS}, s52 offen sc1 lds", tag="v")
        a(f"buffer_load_dwordx4 v7, {WS}, s52 offen offset:1024 sc1 lds", tag="v")
    tile64(a)
    a("s_lshr_b32 s40, s59, 1\ns_and_b32 s41, s59, 1")
    a("v_lshrrev_b32 v3, 3, v1\nv_and_b32 v4, 7, v1\nv_bfe_u32 v5, v1, 4, 1\nv_lshlrev_b32 v5, 2, v5\nv_xor_b32 v4, v4, v5\n"
      "v_mul_u32_u24 v16, 896, v3\nv_lshl_add_u32 v16, v4, 4, v16\nv_add_u32 v16, s42, v16")
    a(f"v_add_u32 v17, {8*896 - 1024}, v16")
    a.wait(vm="k")
    a("s_barrier")
    a.wait(vm="v")
    a("s_barrier")
    st(a, 3)
    if opt("pfgu", 1) == 2:
        touch_share(a, 12, WFB, 24)
        touch_share(a, 14, WFB, 26)
    a(f"s_cmp_ge_u32 s2, 224\ns_cbranch_scc1 {N}_l2skip")
    a.srd(20, 8, D * 896)
    a("s_mul_i32 s49, s40, 28\ns_lshl_b32 s50, s41, 4\ns_add_u32 s49, s49, s50\ns_mul_i32 s49, s49, 896")
    for c in range(8):
        a(f"s_add_u32 m0, s43, {P3_W + c*8192}")
        a("buffer_load_dwordx4 v16, s[20:23], s49 offen lds", maybe=True)
        a("buffer_load_dwordx4 v17, s[20:23], s49 offen offset:1024 lds", maybe=True)
        a(f"s_add_u32 s49, s49, {56*896}")
    a("s_lshl_b32 s46, s37, 6\ns_lshl_b32 s47, s41, 5\ns_add_u32 s46, s46, s47\ns_mul_i32 s46, s46, 896\n"
      "s_lshl_b32 s47, s40, 6\ns_add_u32 s46, s46, s47\ns_add_u32 s46, s46, s42")
    a(f"v_lshrrev_b32 v3, 2, v1\nv_mul_u32_u24 v3, 896, v3\nv_and_b32 v4, 3, v1\nv_lshl_add_u32 v3, v4, 4, v3\n"
      f"v_add_u32 v4, {16*896 - 1024}, v3\ns_add_u32 m0, s43, {P3_X}")
    a("buffer_load_dwordx4 v3, s[16:19], s46 offen lds", maybe=True)
    a("buffer_load_dwordx4 v4, s[16:19], s46 offen offset:1024 lds", maybe=True)
    a(f"{N}_l2skip:")
    if opt("pfgu", 1) == 1:
        touch_share(a, 12, WFB, 24)
        touch_share(a, 14, WFB, 26)
        a("s_waitcnt vmcnt(2)")
    else:
        a("s_waitcnt vmcnt(0)")
    a("s_barrier")
    a(f"s_cmp_ge_u32 s2, 224\ns_cbranch_scc1 {N}_colsum")
    a(f"s_lshr_b32 s46, s37, 1\ns_lshl_b32 s46, s46, {4 + FSH()}\ns_add_u32 s46, s46, {FL_OFF + 2*FREG}\nv_min_u32 v30, 15, v1\n"
      f"v_lshlrev_b32 v30, {FSH()}, v30\nv_add_u32 v30, s46, v30")
    a(f"s_lshl_b32 s48, s37, 1\ns_add_u32 s48, s48, s40\ns_lshl_b32 s48, s48, 15\ns_lshl_b32 s44, s41, 11\n"
      f"s_add_u32 s48, s48, s44\ns_add_u32 s48, s48, {O_OFF}")
    poll(a, 30, 31, 1)
    st(a, 4)
    for c in range(8):
        a(f"s_add_u32 m0, s43, {c*8192}")
        a(f"buffer_load_dwordx4 v8, {WS}, s48 offen sc1 lds", tag=("o", c >> 1))
        a(f"buffer_load_dwordx4 v8, {WS}, s48 offen offset:1024 sc1 lds", tag=("o", c >> 1))
        a("s_add_u32 s48, s48, 4096")
        if c == 5:
            a.wait(vm=[("o", 0)])
            a("s_barrier")
    tile_kc(a)
    a("s_lshr_b32 s40, s59, 1")
    a("v_lshrrev_b32 v3, 4, v1\ns_lshl_b32 s44, s40, 2\nv_or_b32 v4, s44, v3\nv_bfe_u32 v5, v1, 1, 3\nv_xor_b32 v4, v4, v5")
    a(f"s_lshl_b32 s44, s41, 2\nv_add_u32 v3, s44, v3\nv_mul_u32_u24 v14, {DF*2}, v3")
    a("v_lshl_add_u32 v14, v4, 5, v14\nv_and_b32 v5, 1, v1\nv_lshl_add_u32 v14, v5, 4, v14\nv_add_u32 v14, s45, v14")
    a(f"v_add_u32 v15, {8*DF*2 - 2048}, v14")
    for g in range(1, 4):
        a.wait(vm=[("o", g)])
        a("s_barrier")
    a("s_lshl_b32 s47, s59, 12\ns_lshl_b32 s48, s40, 14\ns_lshl_b32 s49, s41, 10\ns_add_u32 s48, s48, s49\n"
      "s_add_u32 s48, s48, 16384")
    a("s_cmp_eq_u32 s40, 0\ns_cselect_b32 s20, s12, s14\ns_cselect_b32 s21, s13, s15")
    a(f"s_mov_b32 s22, {WFB}\ns_mov_b32 s23, 0x20000")
    a(f"s_lshl_b32 s50, s37, 2\ns_add_u32 s50, s50, s59\ns_mul_i32 s50, s50, 28672\ns_add_u32 s50, s50, {H_OFF}")
    a(f"s_lshl_b32 s46, s37, {4 + FSH()}\ns_add_u32 s46, s46, {FL_OFF + 3*FREG}\nv_lshlrev_b32 v30, {FSH()}, v1\nv_add_u32 v30, s46, v30")
    a(f"s_lshl_b32 s46, s38, 1\nv_bfe_u32 v3, v1, 1, 1\nv_mul_u32_u24 v3, 28, v3\nv_and_b32 v4, 1, v1\nv_add3_u32 v3, v3, v4, s46\n"
      f"v_lshlrev_b32 v3, {FSH()}, v3\nv_add_u32 v3, {FL_OFF + 5*FREG}, v3\nv_cmp_lt_u32 vcc, 13, v1\n"
      "v_cndmask_b32 v30, v30, v3, vcc")

    def w4(c, pace=False):
        sl = (c % 3) * P4_SLOT
        for i in range(4):
            if pace and opt("pace", 3):
                a(f"s_waitcnt vmcnt({opt('pace', 3) - 1})")
            a(f"s_add_u32 m0, s48, {sl + i*4096}\ns_mov_b32 s53, {(c*64 + 16*i)*DF*2}")
            a("buffer_load_dwordx4 v14, s[20:23], s53 offen lds", tag=("c4", c))
            a("buffer_load_dwordx4 v15, s[20:23], s53 offen offset:2048 lds", tag=("c4", c))

    def h4(c):
        a(f"s_add_u32 m0, s47, {(c % 3) * P4_SLOT}\ns_add_u32 s52, s50, {c*4096}")
        for i in range(4):
            a(f"buffer_load_dwordx4 v8, {WS}, s52 offen offset:{1024*i} sc1 lds", tag=("c4", c))

    def aux4():
        a(f"v_lshrrev_b32 v3, 5, v1\nv_mul_u32_u24 v3, {DF*4 - 512}, v3\nv_add_u32 v18, v8, v3")
        a(f"s_lshl_b32 s54, s37, 11\ns_lshl_b32 s55, s41, 10\ns_add_u32 s54, s54, s55\ns_mul_i32 s55, s40, {S*16}\n"
          f"s_add_u32 s54, s54, s55\ns_add_u32 s54, s54, {ST_OFF}\ns_lshl_b32 s56, s59, 10")
        for j in range(3):
            a(f"s_add_u32 m0, s56, {P4_AUX + j*4096}\ns_add_u32 s55, s54, {2*j*S*16}")
            a(f"buffer_load_dwordx4 v8, {WS}, s55 offen sc1 lds", tag="aux")
        a(f"s_add_u32 m0, s56, {P4_AUX + 3*4096}\ns_add_u32 s55, s54, {6*S*16}\ns_lshl_b32 s61, s38, 9\n"
          f"s_add_u32 s61, s61, {CS_OFF}\ns_cmp_eq_u32 s59, 3\ns_cselect_b32 s61, {OOB}, s61\n"
          "s_cmp_lt_u32 s59, 2\ns_cselect_b32 s55, s55, s61\ns_cselect_b64 vcc, -1, 0\nv_cndmask_b32 v18, v18, v8, vcc")
        a(f"buffer_load_dwordx4 v18, {WS}, s55 offen sc1 lds", tag="aux")
    a("s_barrier")
    n1 = opt("pre4a", 0)
    for c in range(n1):
        w4(c, True)
    a("s_barrier")
    for c in range(n1, opt("pre4", 3)):
        w4(c)
    poll(a, 30, 31, 2)
    st(a, 5)
    for c in range(3):
        h4(c)
        if c >= opt("pre4", 3):
            w4(c)
    aux4()
    for c in range(7):
        a.wait(vm=[("c4", c)])
        a("s_barrier")
        if 1 <= c and c + 2 < 7:
            h4(c + 2)
            w4(c + 2)
    st(a, 6)
    touch_share(a, 64, WFB, 24, nwg=224)
    tile64(a)
    a.srd(20, 64, WFB)
    a(f"s_lshr_b32 s46, s37, 1\ns_lshl_b32 s46, s46, {4 + FSH()}\ns_add_u32 s46, s46, {FL_OFF + 4*FREG}\nv_min_u32 v30, 13, v1\n"
      f"v_lshlrev_b32 v30, {FSH()}, v30\nv_add_u32 v30, s46, v30")
    a(f"s_lshl_b32 s48, s37, 1\ns_add_u32 s48, s48, s40\ns_mul_i32 s48, s48, {112*1024}\ns_lshl_b32 s44, s41, 11\n"
      f"s_add_u32 s48, s48, s44\ns_add_u32 s48, s48, {HH_OFF}\ns_mul_i32 s49, s59, {16*896}")

    def w5(c):
        a(f"s_add_u32 m0, s43, {(c % P5_NW)*8192}\ns_add_u32 s53, s49, {c*64*896}")
        a("buffer_load_dwordx4 v16, s[20:23], s53 offen lds", tag=("c5", c))
        a("buffer_load_dwordx4 v17, s[20:23], s53 offen offset:1024 lds", tag=("c5", c))

    def a5(c):
        a(f"s_add_u32 m0, s43, {P5_A + (c % P5_NA)*8192}\ns_add_u32 s52, s48, {c*4096}")
        a(f"buffer_load_dwordx4 v8, {WS}, s52 offen sc1 lds", tag=("c5", c))
        a(f"buffer_load_dwordx4 v8, {WS}, s52 offen offset:1024 sc1 lds", tag=("c5", c))
    a("s_barrier")
    for c in range(P5_NW):
        if opt("pace", 3):
            a(f"s_waitcnt vmcnt({opt('pace', 3) - 1})")
        w5(c)
    if opt("eb", 1): a("s_barrier")
    poll(a, 30, 31, 3)
    st(a, 7)
    LA = P5_NA - 2
    for c in range(LA):
        a5(c)
    nw = P5_NW
    wsched = {}
    for k in range(P5_NW, 28):
        b = max(k - P5_NW + 2, round((k - P5_NW) * 1.45) + 2)
        wsched.setdefault(b, []).append(k)
        assert b <= k - LA
    for c in range(28):
        a.wait(vm=[("c5", c)])
        a("s_barrier")
        for k in wsched.get(c, []):
            w5(k)
        if c + LA < 28:
            a5(c + LA)
    st(a, 8)
    st_flush(a)
    a("s_endpgm")


def cons_p1(a):
    rb_col(a, opt("k1_ng", 8))
    a(f"s_cmp_ge_u32 s36, 2\ns_cbranch_scc1 {N}_nt")
    a("s_cmp_eq_u32 s36, 0\ns_cselect_b32 s54, 56, 37\ns_mul_i32 s53, s2, s54\ns_lshl_b32 s53, s53, 7")
    a(f"v_lshlrev_b32 v3, 7, v1\nv_mov_b32 v4, {OOB}\nv_cmp_gt_u32 vcc, s54, v1\nv_cndmask_b32 v3, v4, v3, vcc")
    a("s_waitcnt lgkmcnt(0)")
    a("s_cmp_eq_u32 s36, 0\ns_cselect_b32 s16, s4, s6\ns_cselect_b32 s17, s5, s7")
    a(f"s_mov_b32 s18, {XB}\ns_cselect_b32 s18, s18, {D*3*D*2}\ns_mov_b32 s19, 0x20000")
    a("buffer_load_dword v2, v3, s[16:19], s53 offen", maybe=True)
    a(f"{N}_nt:")
    a(f"s_cmp_lg_u32 s36, 3\ns_cbranch_scc1 {N}_nc")
    a("s_getpc_b64 s[32:33]")
    a(f"{N}_pc:")
    a(f"s_sub_u32 s32, s32, {N}_pc-{KNAME}\ns_subb_u32 s33, s33, 0\ns_and_b32 s33, s33, 0xffff")
    a(f"s_mov_b32 s34, code_end-{KNAME}\ns_mov_b32 s35, 0x20000")
    a("s_and_b32 s53, s58, 3\ns_lshl_b32 s53, s53, 13\nv_lshlrev_b32 v3, 7, v1")
    a("buffer_load_dword v2, v3, s[32:35], s53 offen", maybe=True)
    a(f"{N}_nc:")
    a("s_waitcnt lgkmcnt(0)")
    a.srd(72, 70, WSB)
    if opt("fw", 1):
        a(f"s_cmp_lg_u32 s36, 2\ns_cbranch_scc1 {N}_nfw\ns_cmp_ge_u32 s2, {max(8, 256 >> (7 - FSH()))}\ns_cbranch_scc1 {N}_nfw")
        a(f"v_min_u32 v3, 4, v1\nv_lshlrev_b32 v3, 16, v3\ns_lshl_b32 s53, s2, 7\ns_add_u32 s53, s53, {FL_OFF + FREG}")
        a(f"buffer_load_dword v2, v3, {WS}, s53 offen sc1", maybe=True)
        a(f"{N}_nfw:")
    a(f"s_lshl_b32 s53, s2, 2\ns_add_u32 s53, s53, s36\ns_cmp_lg_u32 s53, 2\ns_cbranch_scc1 {N}_ne")
    a(f"v_mov_b32 v3, 0\ns_mov_b32 s53, {FL_OFF}\ns_mov_b64 exec, 1")
    a(f"buffer_load_dword v4, v3, {WS}, s53 offen" + FS(), maybe=True)
    a.srd(32, 68, 256)
    a("s_waitcnt vmcnt(0)\nv_add_u32 v4, 1, v4\nv_max_u32 v4, 1, v4")
    a("buffer_store_dword v4, v3, s[32:35], 0 offen" + FS(), maybe=True)
    a(f"buffer_store_dword v4, v3, {WS}, s53 offen" + FS(), maybe=True)
    a("s_mov_b64 exec, -1")
    a(f"{N}_ne:")
    a(f"v_mov_b32 v3, {CNT}\nv_mov_b32 v4, 0\nds_write_b32 v3, v4", maybe=True)
    FR = 32
    AC, DA, SA, CA = 128, 176, 184, 192
    ONES = 24
    NS, SLOT, MISC = P1_NS, P1_SLOT, P1_MISC
    a("v_and_b32 v3, 31, v1\nv_lshrrev_b32 v4, 5, v1\ns_lshl_b32 s49, s36, 12")
    a("v_lshlrev_b32 v20, 7, v3\nv_add_u32 v20, s49, v20\nv_bfe_u32 v21, v3, 1, 3\nv_xor_b32 v21, v21, v4")
    for s in range(4):
        a(f"v_xor_b32 v22, {2*s}, v21\nv_lshl_add_u32 v{5+s}, v22, 4, v20")
    a("v_and_b32 v13, 15, v1\nv_lshrrev_b32 v14, 4, v1")
    a("v_bfe_u32 v20, v1, 2, 2\nv_lshl_add_u32 v21, v4, 3, v20\nv_mul_u32_u24 v21, 192, v21\nv_and_b32 v22, 3, v1\n"
      "v_lshlrev_b32 v22, 3, v22\nv_add_u32 v22, 16384, v22\nv_add_u32 v21, v21, v22\nv_and_b32 v23, 1, v14\n"
      "v_lshl_add_u32 v11, v23, 5, v21")
    a("v_lshl_add_u32 v21, v14, 3, v20\nv_mul_u32_u24 v21, 192, v21\nv_add_u32 v21, v21, v22\ns_min_u32 s53, s36, 2\n"
      "s_mul_i32 s53, s53, 56\nv_add_u32 v12, s53, v21")
    for i in range(4):
        a(f"v_mov_b32 v{ONES+i}, {ONES_BF16}")
    for r in range(AC, CA + 8):
        a(f"v_mov_b32 v{r}, 0")
    a("v_and_b32 v20, 3, v1\nv_cmp_eq_u32 s[24:25], 1, v20\nv_cmp_eq_u32 s[26:27], 2, v20\nv_cmp_eq_u32 s[28:29], 3, v20")
    a("v_cmp_lt_u32 s[30:31], 31, v1")
    a(f"s_lshl_b32 s54, s36, 7\ns_add_u32 s54, s54, {MISC}\nv_lshlrev_b32 v18, 2, v13\nv_add_u32 v18, s54, v18")
    a(f"v_lshlrev_b32 v19, 4, v4\nv_add_u32 v19, {MISC}, v19\nv_lshlrev_b32 v17, 4, v1")
    a(f"s_mul_i32 s55, s38, 3\ns_mul_i32 s60, s55, {HB}\ns_lshl_b32 s61, s37, 2\ns_add_u32 s61, s61, s36\n"
      f"s_add_u32 s61, s61, 8\ns_lshl_b32 s61, s61, 11\ns_add_u32 s60, s60, s61\ns_add_u32 s60, s60, {KV_OFF}")
    csc = DH ** -0.5 * math.log2(math.e)
    for i in range(3):
        a(f"s_add_u32 s47, s55, {i}\ns_cmp_lt_u32 s47, 16\ns_cselect_b32 s{40+i}, {fx(csc)}, 1.0\n"
          f"s_lshr_b32 s47, s47, 4\ns_cmp_eq_u32 s47, 1\ns_cselect_b32 s{43+i}, 0, 0x3f80")
    a(f"s_lshl_b32 s61, s37, 4\ns_add_u32 s61, s61, s38\n"
      f"s_lshl_b32 s61, s61, {FSH()}\ns_add_u32 s61, s61, {FL_OFF + 1*FREG}")
    x32 = lambda h, s: FR + 40*h + 4*s
    w32 = lambda h, s, n: FR + 40*h + 8 + 12*s + 4*n
    csf = lambda h, t: FR + 40*h + 32 + 4*t

    def tr(r, ad, off, step, tag):
        return [(f"ds_read_b64_tr_b16 v[{r}:{r+1}], v{ad} offset:{off}", tag),
                (f"ds_read_b64_tr_b16 v[{r+2}:{r+3}], v{ad} offset:{off + step}", tag)]

    def reads(h):
        out = []
        for s in range(2):
            out.append((f"ds_read_b128 v[{x32(h,s)}:{x32(h,s)+3}], v{5+2*h+s}", ("f", h, s, 0)))
            for n in range(3):
                out += tr(w32(h, s, n), 11, (32*h + 16*s)*192 + 56*n, 4*192, ("f", h, s, n))
            out += tr(csf(h, s), 12, 32*h*192 + 32*s, 4*192, ("f", h, s, "c"))
        return out
    mm = lambda d, A, B: f"v_mfma_f32_16x16x32_bf16 v[{d}:{d+3}], v[{A}:{A+3}], v[{B}:{B+3}], v[{d}:{d+3}]"
    mm4 = lambda d, A, B: f"v_mfma_f32_4x4x4_16b_bf16 v[{d}:{d+3}], v[{A}:{A+1}], v[{B}:{B+1}], v[{d}:{d+3}]"
    mm32 = lambda d, A, B: f"v_mfma_f32_32x32x16_bf16 v[{d}:{d+15}], v[{A}:{A+3}], v[{B}:{B+3}], v[{d}:{d+15}]"

    def half(h, rds, extra={}):
        mms = []
        for s in range(2):
            for n in range(3):
                mms.append((mm32(AC + 16*n, w32(h, s, n), x32(h, s)), ("f", h, s, n), 3))
        for s in range(2):
            x = x32(h, s)
            mms += [(mm4(DA, x, x), None, 0), (mm4(SA, ONES, x), None, 0), (mm4(DA + 4, x + 2, x + 2), None, 0),
                    (mm4(SA + 4, ONES, x + 2), None, 0)]
        for s in range(2):
            mms.append((mm(CA + 4*s, ONES, csf(h, s)), ("f", h, s, "c") if s else None, 0))
        rds = list(rds)
        for i, (m, dep, k) in enumerate(mms):
            if dep:
                a.wait(lg=[dep])
            a(m)
            for _ in range(k):
                if rds:
                    t, tag = rds.pop(0)
                    a(t, tag=tag)
            if i in extra:
                a(extra[i])
        assert not rds
    a("s_barrier")
    for t, tag in reads(0):
        a(t, tag=tag)
    a(f"s_mov_b32 s47, 0\ns_mov_b32 s46, {SLOT}")
    a(f"{N}_p1loop:")
    adv = lambda rs: "\n".join(f"v_add_u32 v{r}, s48, v{r}" for r in rs)
    half(0, reads(1),
         {0: f"s_add_u32 s47, s47, 1\ns_cmp_eq_u32 s47, {NS}\ns_cselect_b32 s48, {(-(NS-1)*SLOT) & 0xffffffff}, s46",
          1: adv([5]), 2: adv([6]), 4: adv([7]), 5: adv([8]), 14: adv([11]), 15: adv([12])})
    a(f"s_cmp_eq_u32 s47, 7\ns_cbranch_scc1 {N}_p1last")
    saved = list(a.lg)
    a("s_barrier")
    half(1, reads(0))
    a(f"s_branch {N}_p1loop")
    a(f"{N}_p1last:")
    a.lg = saved
    a.srd(32, 68, 256)
    a("v_mov_b32 v200, 0")
    a("buffer_load_dword v201, v200, s[32:35], 0 offen" + FS(), tag="ep")
    half(1, [])
    st(a, 1)
    ST, T0 = 28, 32
    a(f"ds_write_b32 v18, v{CA}\nds_write_b32 v18, v{CA+4} offset:64")
    for i in range(4):
        a(f"v_add_f32 v{DA+i}, v{DA+i}, v{DA+4+i}")
    a(f"v_add_f32 v{ST}, v{SA}, v{SA+4}")
    a(f"v_cndmask_b32 v{DA}, v{DA}, v{DA+1}, s[24:25]\nv_cndmask_b32 v{DA}, v{DA}, v{DA+2}, s[26:27]\n"
      f"v_cndmask_b32 v{ST+1}, v{DA}, v{DA+3}, s[28:29]")
    a(f"v_mov_b32 v{T0}, v{ST}\nv_mov_b32 v{T0+1}, v{ST+1}")
    a(f"v_permlane32_swap_b32 v{ST}, v{T0}\nv_permlane32_swap_b32 v{ST+1}, v{T0+1}")
    a(f"v_add_f32 v{ST}, v{ST}, v{T0}\nv_add_f32 v{ST+1}, v{ST+1}, v{T0+1}")
    a("s_waitcnt lgkmcnt(0)\ns_barrier")
    CS = 48
    for n in range(3):
        for g in range(4):
            a(f"ds_read_b128 v[{CS+16*n+4*g}:{CS+16*n+4*g+3}], v19 offset:{128*n + 32*g}", tag=("cs", n))
    a(f"v_mul_f32 v{ST}, {fx(-1.0/D)}, v{ST}\nv_mul_f32 v{ST+1}, {fx(1.0/D)}, v{ST+1}")
    a(f"v_fma_f32 v{ST+1}, -v{ST}, v{ST}, v{ST+1}\nv_max_f32 v{ST+1}, 0, v{ST+1}\nv_add_f32 v{ST+1}, {fx(1e-5)}, v{ST+1}")
    a(f"v_rsq_f32 v{T0}, v{ST+1}")
    for n in range(3):
        a.wait(lg=[("cs", n)])
        r0, P = AC + 16*n, 96 + 8*n
        for i in range(8):
            r = r0 + 2*i
            a(f"v_pk_fma_f32 v[{r}:{r+1}], v[{CS+16*n+2*i}:{CS+16*n+2*i+1}], v[{ST}:{ST+1}], v[{r}:{r+1}] op_sel_hi:[1,0,1]")
        a(f"v_mul_f32 v{ST+1}, s{40+n}, v{T0}\nv_mov_b32 v{T0+1}, s{43+n}")
        if n:
            a(f"s_add_u32 s60, s60, {HB}")
        for m in range(2):
            for i in range(4):
                r = r0 + 8*m + 2*i
                a(f"v_pk_mul_f32 v[{r}:{r+1}], v[{r}:{r+1}], v[{ST}:{ST+1}] op_sel:[0,1] op_sel_hi:[1,1]")
            for i in range(4):
                a(f"v_cvt_pk_bf16_f32 v{P+4*m+i}, v{r0+8*m+2*i}, v{r0+8*m+2*i+1}")
            if m:
                a(f"v_cndmask_b32 v{P+6}, v{P+6}, v{T0+1}, s[30:31]\nv_cndmask_b32 v{P+7}, v{P+7}, 0, s[30:31]")
            a(f"buffer_store_dwordx4 v[{P+4*m}:{P+4*m+3}], v17, {WS}, s60 offen offset:{1024*m} sc1")
    a.wait(vm="ep")
    a(f"v_readfirstlane_b32 s63, v201\ns_cmp_lg_u32 s63, 0\ns_cbranch_scc1 {N}_epok")
    get_epoch(a, 200)
    a(f"{N}_epok:")
    set_flag(a, "s61", 200)
    st(a, 2)
    if opt("eb", 1): a("s_barrier")


def cons_p2(a):
    a.vm, a.lg = [], []
    rb_col(a, opt("k2_nh", 2))
    QF = 12
    KF, SS, PP, OA, BU, BD, NM, VF, M = 20, 92, 140, 156, 172, 188, 204, 220, 4
    NV = 4
    a("v_lshlrev_b32 v8, 4, v1\nv_lshrrev_b32 v2, 5, v1")
    a(f"v_and_b32 v3, 31, v1\nv_mov_b32 v10, {NEG}\nv_lshlrev_b32 v11, 2, v2\nv_sub_u32 v11, v3, v11")
    for r in range(16):
        a(f"v_cmp_gt_i32 vcc, {8*(r>>2) + (r&3)}, v11\nv_cndmask_b32 v{BU+r}, v10, 0, vcc\nv_cndmask_b32 v{BD+r}, 0, v10, vcc")
    a("s_lshl_b32 s47, s36, 11\nv_add_u32 v9, s47, v8")
    a("v_bfe_u32 v4, v1, 4, 1\nv_and_b32 v5, 1, v1\nv_lshl_add_u32 v10, v4, 1, v5\nv_xor_b32 v10, v10, v2\n"
      "v_lshl_add_u32 v10, v5, 3, v10\nv_lshlrev_b32 v10, 6, v10\nv_lshl_add_u32 v10, v4, 10, v10\n"
      "v_bfe_u32 v4, v1, 2, 2\nv_lshl_add_u32 v10, v4, 4, v10\nv_bfe_u32 v4, v1, 1, 1\nv_lshl_add_u32 v10, v4, 3, v10\n"
      "s_add_u32 s47, s47, 24576\nv_add_u32 v6, s47, v10\nv_xor_b32 v7, 128, v6")
    a("s_lshl_b32 s46, s37, 2\ns_add_u32 s46, s46, s36\ns_lshl_b32 s42, s46, 4\ns_add_u32 s42, s42, s38\n"
      f"s_lshl_b32 s42, s42, 11\ns_add_u32 s42, s42, {O_OFF}\nv_mov_b32 v11, {NEGB}")
    a(f"s_lshl_b32 s61, s37, 4\ns_add_u32 s61, s61, s38\n"
      f"s_lshl_b32 s61, s61, {FSH()}\ns_add_u32 s61, s61, {FL_OFF + 2*FREG}")
    gbar(a, 0)
    a("s_barrier")
    st(a, 3)
    a(f"ds_read_b128 v[{QF}:{QF+3}], v9 offset:49152\nds_read_b128 v[{QF+4}:{QF+7}], v9 offset:50176", tag="q")
    krd = [(f"ds_read_b128 v[{KF+4*i}:{KF+4*i+3}], v9 offset:{i*1024}", ("kf", i)) for i in range(18)]
    a(f"s_cmp_ge_u32 s46, 8\ns_cbranch_scc1 {N}_p2v")
    a(f"v_cndmask_b32 v10, 0, v11, s[30:31]\ns_sub_u32 s46, 8, s46\nv_add_u32 v4, 1032, v9")
    a(f"{N}_p2i:")
    a("ds_write_b32 v4, v10", maybe=True)
    a(f"v_add_u32 v4, 2048, v4\ns_sub_u32 s46, s46, 1\ns_cmp_lg_u32 s46, 0\ns_cbranch_scc1 {N}_p2i")
    a(f"{N}_p2v:")
    for _ in range(6):
        t, tag = krd.pop(0)
        a(t, tag=tag)
    sreg = lambda j: SS + 16*(j % 3)

    def smm(j, cu, cd, cn):
        cc = cu if j == 0 else (cd if j == 8 else cn)
        r = sreg(j)
        return [f"v_mfma_f32_32x32x16_bf16 v[{r}:{r+15}], v[{KF+8*j}:{KF+8*j+3}], v[{QF}:{QF+3}], {cc}",
                f"v_mfma_f32_32x32x16_bf16 v[{r}:{r+15}], v[{KF+8*j+4}:{KF+8*j+7}], v[{QF+4}:{QF+7}], v[{r}:{r+15}]"]

    def mx(j):
        r = sreg(j)
        out = []
        for i in range(8):
            m = M + (i & 1)
            if j == 0 and i < 2:
                out.append(f"v_max_f32 v{m}, v{r+2*i}, v{r+2*i+1}")
            else:
                out.append(f"v_max3_f32 v{m}, v{m}, v{r+2*i}, v{r+2*i+1}")
        return out

    def vrd(j):
        for c in range(2):
            for u in range(2):
                r = VF + 8*(j % NV) + 4*c + 2*u
                a(f"ds_read_b64_tr_b16 v[{r}:{r+1}], v{6+u} offset:{j*2048 + c*256}", tag=("vf", j))
    R = lambda x: f"v[{x}:{x+15}]"
    for j in range(11):
        mms = smm(j, R(BU), R(BD), "0") if j < 9 else []
        va = mx(j - 2) if j >= 2 else []
        if mms:
            a.wait(lg=[("kf", 2*j + 1)])
        for i in range(2):
            if mms:
                a(mms[i])
            if krd:
                t, tag = krd.pop(0)
                a(t, tag=tag)
            for v in va[4*i:4*i+4]:
                a(v)
        if j == 8:
            a("s_barrier")
            for jj in range(NV - 1):
                vrd(jj)
    a(f"v_max_f32 v{M}, v{M}, v{M+1}\nv_mov_b32 v{M+1}, v{M}\nv_permlane32_swap_b32 v{M}, v{M+1}\n"
      f"v_max_f32 v{M}, v{M}, v{M+1}")
    for i in range(8):
        a(f"v_pk_add_f32 v[{BU+2*i}:{BU+2*i+1}], v[{BU+2*i}:{BU+2*i+1}], v[{M}:{M+1}] op_sel_hi:[1,0] neg_lo:[0,1] neg_hi:[0,1]")
    for m in smm(0, R(BU), R(BD), R(NM)):
        a(m)
    for r in range(16):
        a(f"v_sub_f32 v{NM+r}, 0, v{M}")
    for m in smm(1, R(BU), R(BD), R(NM)):
        a(m)
    late = [f"v_sub_f32 v{BD+r}, v{BD+r}, v{M}" for r in range(16)]

    def pv(j):
        pr = PP + 8*(j & 1)
        vr_ = VF + 8*(j % NV)
        cc = "0" if j == 0 else R(OA)
        return [f"v_mfma_f32_32x32x16_bf16 {R(OA)}, v[{vr_}:{vr_+3}], v[{pr}:{pr+3}], {cc}",
                f"v_mfma_f32_32x32x16_bf16 {R(OA)}, v[{vr_+4}:{vr_+7}], v[{pr+4}:{pr+7}], {R(OA)}"]
    for j in range(9):
        r, pr = sreg(j), PP + 8*(j & 1)
        va = [f"v_exp_f32 v{r+i}, v{r+i}" for i in range(16)]
        va += [f"v_cvt_pk_bf16_f32 v{pr+i}, v{r+2*i}, v{r+2*i+1}" for i in range(8)]
        if j < 4:
            va += late[4*j:4*j+4]
        mf = (pv(j - 1) if j else []) + (smm(j + 2, R(BU), R(BD), R(NM)) if j + 2 < 9 else [])
        if j:
            a.wait(lg=[("vf", j - 1)])
        k = 0
        for idx, v in enumerate(va):
            a(v)
            if idx % 4 == 1 and k < len(mf):
                a(mf[k]); k += 1
            if idx == 10 and j >= 1 and j + NV - 2 < 9:
                vrd(j + NV - 2)
        assert k == len(mf)
    a.wait(lg=[("vf", 8)])
    for m in pv(8):
        a(m)
    a(f"v_mov_b32 v{M}, v{OA+12}\nv_mov_b32 v{M+1}, v{OA+12}\nv_permlane32_swap_b32 v{M}, v{M+1}\nv_rcp_f32 v{M}, v{M+1}")
    for m in range(2):
        for i in range(4):
            r = OA + 8*m + 2*i
            a(f"v_pk_mul_f32 v[{r}:{r+1}], v[{r}:{r+1}], v[{M}:{M+1}] op_sel_hi:[1,0]")
        for i in range(4):
            a(f"v_cvt_pk_bf16_f32 v{20+4*m+i}, v{OA+8*m+2*i}, v{OA+8*m+2*i+1}")
        if m:
            a("v_cndmask_b32 v26, v26, 0, s[30:31]\nv_cndmask_b32 v27, v27, 0, s[30:31]")
        a(f"buffer_store_dwordx4 v[{20+4*m}:{23+4*m}], v8, {WS}, s42 offen offset:{1024*m} sc1")
    set_flag(a, "s61", 200)
    st(a, 4)
    a("s_barrier")
    a(f"s_cmp_ge_u32 s2, 224\ns_cbranch_scc1 {N}_colsum")


def g64_addr(a, WA, wbase):
    a("v_lshrrev_b32 v4, 5, v1\nv_bfe_u32 v3, v1, 2, 2\nv_lshl_add_u32 v5, v4, 2, v3\nv_lshlrev_b32 v5, 7, v5")
    a("v_bfe_u32 v6, v1, 4, 1\nv_lshlrev_b32 v6, 1, v6\nv_bfe_u32 v7, v1, 1, 1\nv_add_u32 v6, v6, v7")
    a("s_lshl_b32 s47, s45, 2\nv_add_u32 v6, s47, v6")
    a("v_lshrrev_b32 v7, 1, v3\nv_lshlrev_b32 v7, 2, v7\nv_xor_b32 v6, v6, v7")
    a(f"v_lshl_add_u32 v5, v6, 4, v5\nv_and_b32 v7, 1, v1\nv_lshl_add_u32 v{WA}, v7, 3, v5")
    if wbase:
        a(f"v_add_u32 v{WA}, {wbase}, v{WA}")


HKEEP = 108


def cons_p3(a):
    a.vm, a.lg = [], []
    tile64(a)
    a("s_and_b32 s44, s36, 1\ns_lshr_b32 s45, s36, 1")
    a("v_and_b32 v3, 31, v1\nv_lshrrev_b32 v4, 5, v1\nv_lshlrev_b32 v10, 6, v3\nv_lshl_add_u32 v10, v4, 3, v10\n"
      f"s_lshl_b32 s47, s36, 11\ns_add_u32 s47, s47, {P3_X}\nv_add_u32 v10, s47, v10")
    RES = 96
    for g in range(4):
        a(f"ds_read_b64 v[{RES+2*g}:{RES+2*g+1}], v10 offset:{16*g}", tag="x")
    a("s_lshl_b32 s46, s37, 6\ns_lshl_b32 s47, s44, 5\ns_add_u32 s46, s46, s47")
    a("s_lshl_b32 s52, s37, 1\ns_add_u32 s52, s52, s44\ns_mul_i32 s52, s52, 28\ns_lshl_b32 s53, s38, 2\n"
      "s_add_u32 s52, s52, s53\ns_lshl_b32 s53, s45, 1\ns_add_u32 s52, s52, s53\ns_lshl_b32 s52, s52, 10\n"
      f"s_add_u32 s52, s52, {H_OFF}\nv_lshlrev_b32 v13, 4, v1")
    a(f"v_add_u32 v9, s46, v3\nv_lshlrev_b32 v9, 4, v9\ns_mul_i32 s54, s38, {S*16}\ns_lshl_b32 s53, s45, 3\n"
      f"s_add_u32 s54, s54, s53\ns_add_u32 s54, s54, {ST_OFF}\ns_mov_b32 s55, {ONES_BF16}")
    a(f"s_lshr_b32 s61, s37, 1\ns_lshl_b32 s61, s61, 4\ns_and_b32 s53, s37, 1\ns_mul_i32 s53, s53, 7\ns_add_u32 s61, s61, s53\n"
      f"s_add_u32 s61, s61, s38\ns_lshl_b32 s61, s61, {FSH()}\n"
      f"s_add_u32 s61, s61, {FL_OFF + 3*FREG}")
    HA, WA = 104, 105
    a(f"s_lshl_b32 s47, s44, 12\nv_add_u32 v{HA}, s47, v13")
    g64_addr(a, WA, P3_W)
    a("s_mov_b32 s50, 0xffff0000")
    a.wait(lg="x")
    for j in range(8):
        a(f"v_lshlrev_b32 v{16+2*j}, 16, v{RES+j}\nv_and_b32 v{17+2*j}, s50, v{RES+j}")
    gbar(a, 1)
    for c in range(9):
        if c < 8 and c % 2 == 0:
            a("s_barrier")
        if c == 0: st(a, 5)
        fb = 32 + 32 * (c & 1)
        fbp = 32 + 32 * ((c - 1) & 1)
        if c == 8:
            a("s_waitcnt lgkmcnt(0)\ns_barrier")
        for s in range(4):
            if c:
                a.wait(lg=[("f", c - 1, s)])
                a(f"v_mfma_f32_32x32x16_bf16 v[16:31], v[{fbp+4+8*s}:{fbp+7+8*s}], v[{fbp+8*s}:{fbp+3+8*s}], v[16:31]")
            if c < 8:
                a(f"ds_read_b128 v[{fb+8*s}:{fb+3+8*s}], v{HA} offset:{c*8192 + s*1024}", tag=("f", c, s))
                a(f"ds_read_b64_tr_b16 v[{fb+4+8*s}:{fb+5+8*s}], v{WA} offset:{c*8192 + s*2048}", tag=("f", c, s))
                a(f"ds_read_b64_tr_b16 v[{fb+6+8*s}:{fb+7+8*s}], v{WA} offset:{c*8192 + s*2048 + 1024}", tag=("f", c, s))
    H = HKEEP
    for m in range(2):
        for i in range(4):
            a(f"v_cvt_pk_bf16_f32 v{H+4*m+i}, v{16+8*m+2*i}, v{17+8*m+2*i}")
        a(f"buffer_store_dwordx4 v[{H+4*m}:{H+4*m+3}], v13, {WS}, s52 offen offset:{1024*m} sc1")
    for j in range(8):
        c0, c1 = ("0", "0") if j == 0 else ("v40", "v41")
        a(f"v_dot2_f32_bf16 v40, v{H+j}, s55, {c0}\nv_dot2_f32_bf16 v41, v{H+j}, v{H+j}, {c1}")
    a("v_mov_b32 v42, v40\nv_mov_b32 v43, v41\nv_permlane32_swap_b32 v40, v42\nv_permlane32_swap_b32 v41, v43\n"
      "v_add_f32 v40, v40, v42\nv_add_f32 v41, v41, v43")
    a("s_mov_b32 exec_hi, 0")
    a(f"buffer_store_dwordx2 v[40:41], v9, {WS}, s54 offen sc1")
    a("s_mov_b64 exec, -1")
    set_flag(a, "s61", 44)
    st(a, 6)
    if opt("eb", 1): a("s_barrier")


def cons_p4(a):
    a.vm, a.lg = [], []
    SLOT, AUX = P4_SLOT, P4_AUX
    tile_kc(a)
    ACC, FR = 128, 32
    NM, C2, K0, K1 = 120, 122, 124, 126
    acc = lambda b, t: ACC + 64*b + 16*t
    a("s_and_b32 s43, s36, 1\ns_lshr_b32 s44, s36, 1\nv_lshrrev_b32 v4, 5, v1")
    a("s_lshl_b32 s47, s43, 13\nv_lshlrev_b32 v19, 4, v1\nv_add_u32 v20, s47, v19")
    a("v_bfe_u32 v5, v1, 2, 2\nv_bfe_u32 v6, v1, 4, 1\nv_lshl_add_u32 v7, v4, 2, v5\nv_lshlrev_b32 v7, 8, v7")
    a("v_lshl_add_u32 v7, v6, 14, v7\nv_and_b32 v8, 3, v1\nv_lshl_add_u32 v7, v8, 3, v7\nv_add_u32 v7, 16384, v7")
    a("v_lshl_add_u32 v5, v6, 2, v5\ns_lshl_b32 s47, s44, 2\nv_xor_b32 v5, s47, v5")
    a("v_lshl_add_u32 v24, v5, 5, v7\nv_xor_b32 v25, 32, v24\nv_xor_b32 v26, 64, v24\nv_xor_b32 v27, 96, v24")
    for r in range(ACC, ACC + 128):
        a(f"v_mov_b32 v{r}, 0")
    a("s_lshl_b32 s56, s37, 1\ns_add_u32 s56, s56, s43\ns_mul_i32 s56, s56, 224\ns_lshl_b32 s47, s38, 3\n"
      "s_add_u32 s56, s56, s47\ns_lshl_b32 s47, s44, 2\ns_add_u32 s56, s56, s47\ns_lshl_b32 s56, s56, 10\n"
      f"s_add_u32 s56, s56, {HH_OFF}\ns_add_u32 s55, s56, {112*1024}")
    a(f"s_lshl_b32 s47, s43, 10\ns_add_u32 s47, s47, {AUX}\nv_add_u32 v16, s47, v19")
    a(f"s_lshl_b32 s47, s44, 8\ns_add_u32 s47, s47, {AUX + 14336}\nv_lshlrev_b32 v15, 4, v4\nv_add_u32 v15, s47, v15")
    a(f"s_lshl_b32 s61, s37, 4\ns_add_u32 s61, s61, s38\n"
      f"s_lshl_b32 s61, s61, {FSH()}\ns_add_u32 s61, s61, {FL_OFF + 4*FREG}")
    SL = 80
    hf_ = lambda s, b: FR + 24*(s & 1) + 4*b
    wf_ = lambda s, t: FR + 24*(s & 1) + 8 + 4*t

    def reads(s):
        out = []
        for i in range(4):
            if i < 2:
                out.append((f"ds_read_b128 v[{hf_(s,i)}:{hf_(s,i)+3}], v20 offset:{i*4096 + s*1024}", ("f", s, 0)))
            r = wf_(s, i)
            out.append((f"ds_read_b64_tr_b16 v[{r}:{r+1}], v{24+i} offset:{s*4096}", ("f", s, i >> 1)))
            out.append((f"ds_read_b64_tr_b16 v[{r+2}:{r+3}], v{24+i} offset:{s*4096+2048}", ("f", s, i >> 1)))
        return out

    def step(s, rds, extra={}, pre={}):
        rds = list(rds)
        for i in range(8):
            t, b = i >> 1, i & 1
            if i in pre:
                pre[i]()
            if i % 4 == 0:
                a.wait(lg=[("f", s, i >> 2)])
            d = acc(b, t)
            a(f"v_mfma_f32_32x32x16_bf16 v[{d}:{d+15}], v[{wf_(s,t)}:{wf_(s,t)+3}], v[{hf_(s,b)}:{hf_(s,b)+3}], v[{d}:{d+15}]")
            if not (pre and i < min(pre)):
                for _ in range(2):
                    if rds:
                        t_, tag = rds.pop(0)
                        a(t_, tag=tag)
            if i in extra:
                e = extra[i]
                e() if callable(e) else a(e)
        assert not rds
    gbar(a, 2)
    a("s_barrier")
    st(a, 7)
    for t, tag in reads(0):
        a(t, tag=tag)
    a(f"s_mov_b32 s47, 0\ns_mov_b32 s49, 0\ns_mov_b32 s46, {SLOT}")
    a(f"{N}_p4loop:")
    step(0, reads(1), {0: f"s_add_u32 s47, s47, 1\ns_add_u32 s49, s49, 1\ns_cmp_eq_u32 s49, 3\ns_cselect_b32 s49, 0, s49\n"
                          f"s_cselect_b32 s48, {(-2*SLOT) & 0xffffffff}, s46"})
    step(1, reads(2))
    step(2, reads(3), {6: "v_add_u32 v20, s48, v20\nv_add_u32 v24, s48, v24\nv_add_u32 v25, s48, v25",
                       7: "v_add_u32 v26, s48, v26\nv_add_u32 v27, s48, v27"})
    a(f"s_cmp_eq_u32 s47, 7\ns_cbranch_scc1 {N}_p4last")
    saved = list(a.lg)
    step(3, reads(0), pre={2: lambda: a("s_waitcnt lgkmcnt(0)\ns_barrier")})
    a(f"s_branch {N}_p4loop")
    a(f"{N}_p4last:")
    a.lg = saved
    k0 = -2.0 * math.sqrt(2.0 / math.pi) * math.log2(math.e)
    sv = []
    for s_, n in ((14, 14), (6, 6), (12, 2)):
        sv += [f"v_add_f32 v{SL+i}, v{SL+i}, v{SL+s_+i}" for i in range(n)]
    sv += [f"v_add_f32 v{SL+2+i}, v{SL+2+i}, v{SL+4+i}" for i in range(2)]
    sv += [f"v_add_f32 v{SL+i}, v{SL+i}, v{SL+2+i}" for i in range(2)]
    sv += [f"v_mul_f32 v{NM}, {fx(-1.0/D)}, v{SL}", f"v_mul_f32 v{C2}, {fx(1.0/D)}, v{SL+1}",
           f"v_fma_f32 v{C2}, -v{NM}, v{NM}, v{C2}", f"v_mov_b32 v{NM+1}, v{NM}",
           f"v_max_f32 v{C2}, 0, v{C2}", f"v_add_f32 v{C2}, {fx(1e-5)}, v{C2}",
           f"v_permlane32_swap_b32 v{NM}, v{NM+1}",
           f"v_rsq_f32 v13, v{C2}", f"v_mov_b32 v{C2+1}, v{C2}", f"v_mul_f32 v{K0}, {fx(k0)}, v13", "v_mul_f32 v14, v13, v13",
           f"v_mul_f32 v14, v14, v{K0}", f"v_mul_f32 v{K1}, {fx(0.044715)}, v14", f"v_mov_b32 v{K0+1}, v{K0}",
           f"v_mov_b32 v{K1+1}, v{K1}", f"v_permlane32_swap_b32 v{C2}, v{C2+1}", f"v_permlane32_swap_b32 v{K0}, v{K0+1}",
           f"v_permlane32_swap_b32 v{K1}, v{K1+1}"]
    strd = [(f"ds_read_b128 v[{SL+4*p}:{SL+4*p+3}], v16 offset:{p*2048}", "st") for p in range(7)]

    def part(lo, hi, w=False):
        def f():
            if w: a.wait(lg="st")
            for x in sv[lo:hi]:
                a(x)
        return f
    step(3, strd, {5: part(0, 6, True), 6: part(6, 12), 7: part(12, 26)})
    csr = lambda t: (32, 48, 64, 84)[t]
    for t in range(4):
        for q in range(4):
            r = csr(t) + 4*q
            a(f"ds_read_b128 v[{r}:{r+3}], v15 offset:{(q >> 1)*512 + t*64 + (q & 1)*32}", tag=("cs", t))
    part(26, len(sv))()
    a("s_waitcnt lgkmcnt(0)\ns_barrier")
    st(a, 8)
    T = 100
    for t in range(4):
        for b in range(2):
            g0, u0 = acc(b, t), acc(b, t) + 8
            sel3 = "op_sel_hi:[1,0,0]" if b == 0 else "op_sel:[0,1,1] op_sel_hi:[1,1,1]"
            selm = "op_sel_hi:[1,0,1]" if b == 0 else "op_sel:[0,1,0] op_sel_hi:[1,1,1]"
            pr = lambda x, j: f"v[{x+2*j}:{x+2*j+1}]"
            out = []
            out += [f"v_pk_fma_f32 {pr(g0,j)}, {pr(csr(t),j)}, v[{NM}:{NM+1}], {pr(g0,j)} {selm}" for j in range(8)]
            out += [f"v_pk_mul_f32 {pr(T,j)}, {pr(g0,j)}, {pr(g0,j)}" for j in range(4)]
            out += [f"v_pk_fma_f32 {pr(T,j)}, {pr(T,j)}, v[{K1}:{K1+1}], v[{K0}:{K0+1}] {sel3}" for j in range(4)]
            out += [f"v_pk_mul_f32 {pr(T,j)}, {pr(T,j)}, {pr(g0,j)}" for j in range(4)]
            out += [f"v_exp_f32 v{T+j}, v{T+j}" for j in range(8)]
            out += [f"v_pk_mul_f32 {pr(g0,j)}, {pr(g0,j)}, {pr(u0,j)}" for j in range(4)]
            out += [f"v_pk_fma_f32 {pr(T,j)}, {pr(T,j)}, v[{C2}:{C2+1}], v[{C2}:{C2+1}] {sel3}" for j in range(4)]
            out += [f"v_rcp_f32 v{T+j}, v{T+j}" for j in range(8)]
            out += [f"v_pk_mul_f32 {pr(g0,j)}, {pr(g0,j)}, {pr(T,j)}" for j in range(4)]
            out += [f"v_cvt_pk_bf16_f32 v{u0+j}, v{g0+2*j}, v{g0+2*j+1}" for j in range(4)]
            out += [f"buffer_store_dwordx4 v[{u0}:{u0+3}], v19, {WS}, s{56-b} offen offset:{1024*t} sc1"]
            for it in out:
                a(it)
    set_flag(a, "s61", 44)
    st(a, 9)
    if opt("eb", 1): a("s_barrier")


def cons_p5(a):
    a.vm, a.lg = [], []
    tile64(a)
    a("s_and_b32 s44, s36, 1\ns_lshr_b32 s45, s36, 1")
    a("s_lshl_b32 s46, s37, 6\ns_lshl_b32 s47, s44, 5\ns_add_u32 s46, s46, s47")
    a("v_lshrrev_b32 v6, 2, v1\nv_add_u32 v8, s46, v6\nv_mul_u32_u24 v14, 896, v8")
    a("v_and_b32 v7, 3, v1\nv_lshl_add_u32 v14, v7, 4, v14")
    a(f"s_lshl_b32 s47, s45, 6\ns_add_u32 s47, s47, s42\nv_add_u32 v14, s47, v14\nv_add_u32 v15, {16*896}, v14")
    a(f"s_mul_i32 s51, s36, 2560\ns_add_u32 s51, s51, {4*8192}")
    a("v_mul_u32_u24 v11, 80, v6\nv_lshl_add_u32 v11, v7, 4, v11\nv_add_u32 v11, s51, v11")
    a("v_and_b32 v3, 31, v1\nv_lshrrev_b32 v4, 5, v1\nv_mul_u32_u24 v10, 80, v3\nv_lshl_add_u32 v10, v4, 3, v10\n"
      "v_add_u32 v10, s51, v10")
    HA, WA = 104, 105
    a(f"s_lshl_b32 s47, s44, 12\ns_add_u32 s47, s47, {P5_A}\nv_lshlrev_b32 v{HA}, 4, v1\nv_add_u32 v{HA}, s47, v{HA}")
    g64_addr(a, WA, 0)
    a(f"v_add_u32 v{WA+1}, 0x10000, v{WA}\ns_mov_b32 s50, 0xffff0000")
    a.srd(16, 66, XB)
    for j in range(8):
        a(f"v_lshlrev_b32 v{16+2*j}, 16, v{HKEEP+j}\nv_and_b32 v{17+2*j}, s50, v{HKEEP+j}")
    gbar(a, 3)
    for c in range(29):
        if c < 28:
            a("s_barrier")
        if c == 0: st(a, 10)
        fb = 32 + 32 * (c & 1)
        fbp = 32 + 32 * ((c - 1) & 1)
        wo = (c % P5_NW) * 8192
        wa, wo = WA + wo // 65536, wo % 65536
        ao = (c % P5_NA) * 8192
        for s in range(4):
            if c:
                a.wait(lg=[("f", c - 1, s)])
                a(f"v_mfma_f32_32x32x16_bf16 v[16:31], v[{fbp+4+8*s}:{fbp+7+8*s}], v[{fbp+8*s}:{fbp+3+8*s}], v[16:31]")
            if c < 28:
                a(f"ds_read_b128 v[{fb+8*s}:{fb+3+8*s}], v{HA} offset:{ao + s*1024}", tag=("f", c, s))
                a(f"ds_read_b64_tr_b16 v[{fb+4+8*s}:{fb+5+8*s}], v{wa} offset:{wo + s*2048}", tag=("f", c, s))
                a(f"ds_read_b64_tr_b16 v[{fb+6+8*s}:{fb+7+8*s}], v{wa} offset:{wo + s*2048 + 1024}", tag=("f", c, s))
    for g in range(4):
        a(f"v_cvt_pk_bf16_f32 v{32+2*g}, v{16+4*g}, v{17+4*g}\nv_cvt_pk_bf16_f32 v{33+2*g}, v{18+4*g}, v{19+4*g}")
        a(f"ds_write_b64 v10, v[{32+2*g}:{33+2*g}] offset:{16*g}", tag="ew")
    a("ds_read_b128 v[40:43], v11", tag="er0")
    a(f"ds_read_b128 v[44:47], v11 offset:{16*80}", tag="er1")
    for i in range(2):
        a.wait(lg=f"er{i}")
        a(f"buffer_store_dwordx4 v[{40+4*i}:{43+4*i}], v{14+i}, s[16:19], 0 offen")
    st_flush(a)
    a("s_endpgm")


def colsum(a):
    a.vm, a.lg = [], []
    a(f"{N}_colsum:")
    a(f"s_cmp_ge_u32 s2, 252\ns_cbranch_scc1 {N}_end")
    a("s_sub_u32 s37, s2, 224\ns_cmp_ge_u32 s37, 14\ns_cselect_b32 s38, 14, 0\ns_cselect_b32 s16, s14, s12\n"
      "s_cselect_b32 s17, s15, s13\ns_sub_u32 s38, s37, s38\ns_lshl_b32 s38, s38, 8")
    a(f"s_mov_b32 s18, {WFB}\ns_mov_b32 s19, 0x20000")
    a(f"v_lshrrev_b32 v3, 4, v1\ns_mul_i32 s39, s36, 56\nv_add_u32 v3, s39, v3\nv_mul_u32_u24 v3, {DF*2}, v3")
    a("v_and_b32 v4, 15, v1\nv_lshl_add_u32 v3, v4, 4, v3\nv_add_u32 v3, s38, v3")
    for i in range(14):
        a(f"s_mov_b32 s40, {i*4*DF*2}")
        a(f"buffer_load_dwordx4 v[{32+4*i}:{35+4*i}], v3, s[16:19], s40 offen", tag=("cs", i))
    a("s_mov_b32 s50, 0xffff0000")
    for i in range(14):
        a.wait(vm=[("cs", i)])
        for j in range(4):
            r = 32 + 4*i + j
            if i == 0:
                a(f"v_lshlrev_b32 v{8+2*j}, 16, v{r}\nv_and_b32 v{9+2*j}, s50, v{r}")
            else:
                a(f"v_lshlrev_b32 v16, 16, v{r}\nv_and_b32 v17, s50, v{r}\n"
                  f"v_add_f32 v{8+2*j}, v{8+2*j}, v16\nv_add_f32 v{9+2*j}, v{9+2*j}, v17")
    a("v_lshlrev_b32 v5, 5, v0")
    a("ds_write_b128 v5, v[8:11]\nds_write_b128 v5, v[12:15] offset:16")
    a("s_waitcnt lgkmcnt(0)\ns_barrier")
    a(f"s_cmp_ge_u32 s36, 2\ns_cbranch_scc1 {N}_end")
    a("v_lshlrev_b32 v5, 2, v0")
    for i in range(32):
        a(f"ds_read_b32 v{32+i}, v5 offset:{i*512}")
    a("s_waitcnt lgkmcnt(0)")
    for s_ in (16, 8, 4, 2, 1):
        for i in range(s_):
            a(f"v_add_f32 v{32+i}, v{32+i}, v{32+i+s_}")
    a(f"s_lshl_b32 s41, s37, 9\ns_add_u32 s41, s41, {CS_OFF}")
    a(f"buffer_store_dword v32, v5, {WS}, s41 offen sc1")
    a(f"s_lshl_b32 s61, s37, 1\ns_add_u32 s61, s61, s36\ns_lshl_b32 s61, s61, {FSH()}\ns_add_u32 s61, s61, {FL_OFF + 5*FREG}")
    set_flag(a, "s61", 44, direct=True)
    st(a, 9)
    st_flush(a)


KNAME = "sequential_preLN__sliding_block__glu_gated_geglu__prompt_kernel"


def mega():
    a = Asm()
    st(a, 0)
    a("s_load_dwordx4 s[4:7], s[0:1], 0\ns_load_dwordx2 s[8:9], s[0:1], 16\ns_load_dwordx4 s[12:15], s[0:1], 32\n"
      "s_load_dwordx8 s[64:71], s[0:1], 48")
    lane_wave(a)
    a(f"s_cmp_ge_u32 s2, 256\ns_cbranch_scc1 {N}_end")
    a("s_and_b32 s57, s2, 7\ns_lshr_b32 s58, s2, 3\ns_and_b32 s59, s36, 3")
    a(f"s_cmp_lt_u32 s36, 4\ns_cbranch_scc1 {N}_cons")
    loader(a)
    a(f"{N}_cons:")
    a.vm, a.lg = [], []
    cons_p1(a)
    cons_p2(a)
    cons_p3(a)
    cons_p4(a)
    cons_p5(a)
    colsum(a)
    a(f"{N}_end:")
    a("s_endpgm")
    return a.lines


if __name__ == "__main__":
    args = sys.argv[1:]
    if "--stamp" in args:
        Cfg.stamp = True
        args.remove("--stamp")
    for x in list(args):
        if "=" in x:
            k, v = x.split("=")
            Cfg.opts[k] = int(v)
            args.remove(x)
    lines = mega()
    ref = open("sequential_preLN__sliding_block__glu_gated_geglu__prompt.s.ref").read()
    out = [l for l in ref.split("\n") if l.startswith(";") and "@launch" not in l and "Override" not in l
           and "grid=ceil" not in l]
    out.append("; @launch grid=(256,1,1) block=(512,1,1) lds=163840")
    out += ['.amdgcn_target "amdgcn-amd-amdhsa--gfx950"', ".text"]
    out += kernel_head(KNAME)
    out += hazard_pass_fast(lines)
    out += ["code_end:", "    s_endpgm", '.section .rodata,"a"']
    out += kernel_desc(KNAME, 256)
    open(args[0] if args else "m_all.s", "w").write("\n".join(out) + "\n")
```
